```python
import torch

def _softmax(x, axis=-1):
    return torch.softmax(x, dim=axis)
def _gelu(x):
    return torch.nn.functional.gelu(x, approximate="tanh")
def _silu(x):
    return torch.nn.functional.silu(x)
def _sigmoid(x):
    return torch.sigmoid(x)
def _layernorm(x, axis=-1, eps=1e-5):
    m = x.mean(dim=axis, keepdim=True)
    v = x.var(dim=axis, keepdim=True, unbiased=False)
    return (x - m) / torch.sqrt(v + eps)
def _scatter_add(tgt, idx, src, axis=0):
    return tgt.clone().index_add_(axis, idx, src)
def _segment_sum(src, seg, n):
    out = torch.zeros((n,) + src.shape[1:], dtype=src.dtype)
    return out.index_add_(0, seg, src)
def _pad(x, pw):
    flat = tuple(v for pair in reversed(pw) for v in pair)
    return torch.nn.functional.pad(x, flat)

kernel_name = 'interleave_layers__sliding_local_dilated__linear_kernel_hedgehog__prompt'

def setup_inputs():

    _w = (lambda a: (lambda t: t.to(torch.bfloat16) if t.is_floating_point() else t)(torch.as_tensor(a)))
    def _A_setup():
        B, S, D = 1, 2048, 1024
        return {
            "x": _w((lambda *s: torch.randn(*s, dtype=torch.bfloat16) * 0.05)(B, S, D)),
            "wqkv": _w((lambda *s: torch.randn(*s, dtype=torch.bfloat16) * 0.05)(D, 3 * D)),
            "wo": _w((lambda *s: torch.randn(*s, dtype=torch.bfloat16) * 0.05)(D, D)),
        }
    _A_in = _A_setup()

    def _B_setup():
        B, S, D, H = 1, 2048, 1024, 32
        Dh = D // H
        return {
            "x": _w((lambda *s: torch.randn(*s, dtype=torch.bfloat16) * 0.05)(B, S, D)),
            "wqkv": _w((lambda *s: torch.randn(*s, dtype=torch.bfloat16) * 0.4)(D, 3 * D)),
            "w_phi": _w((lambda *s: torch.randn(*s, dtype=torch.bfloat16) * 0.4)(H, Dh, Dh) * (Dh ** -0.5)),
            "wo": _w((lambda *s: torch.randn(*s, dtype=torch.bfloat16) * 0.1)(D, D)),
        }
    _B_in = _B_setup()

    return {
        "A_x": _A_in["x"],
        "A_wqkv": _A_in["wqkv"],
        "A_wo": _A_in["wo"],
        "B_x": _B_in["x"],
        "B_wqkv": _B_in["wqkv"],
        "B_w_phi": _B_in["w_phi"],
        "B_wo": _B_in["wo"],
    }

def reference(A_x, A_wqkv, A_wo, B_x, B_wqkv, B_w_phi, B_wo):
    def _A_ref(x, wqkv, wo):
        B, S, D = x.shape
        H = 32; Dh = D // H
        W, dil = 8, 2
        qkv = (lambda x, *d: x.permute(*d))((x @ wqkv).reshape(B, S, 3, H, Dh), 2, 0, 3, 1, 4)
        q, k, v = qkv[0], qkv[1], qkv[2]
        scale = Dh ** -0.5
        pos = torch.arange(S)
        off = torch.arange(W) * dil
        idx = pos[:, None] - off[None, :]
        mask = idx >= 0
        idx_c = torch.where(mask, idx, 0).reshape(-1)
        kg = k[:, :, idx_c, :].reshape(B, H, S, W, Dh)
        vg = v[:, :, idx_c, :].reshape(B, H, S, W, Dh)
        logits = torch.einsum("bhsd,bhswd->bhsw", q, kg) * scale
        logits = torch.where(mask[None, None, :, :], logits, -1e9)
        attn = _softmax(logits, axis=-1)
        o = torch.einsum("bhsw,bhswd->bhsd", attn, vg)
        return (lambda x, *d: x.permute(*d))(o, 0, 2, 1, 3).reshape(B, S, D) @ wo

    def _B_ref(x, wqkv, w_phi, wo):
        B, S, D = x.shape
        H = 32; Dh = D // H
        qkv = (lambda x, *d: x.permute(*d))((x @ wqkv).reshape(B, S, 3, H, Dh), 2, 0, 3, 1, 4)
        q, k, v = qkv[0], qkv[1], qkv[2]
        pq = torch.einsum("bhsd,hdf->bhsf", q, w_phi)
        pk = torch.einsum("bhsd,hdf->bhsf", k, w_phi)
        phi_q = torch.concatenate([_softmax(pq, axis=-1), _softmax(-pq, axis=-1)], axis=-1)
        phi_k = torch.concatenate([_softmax(pk, axis=-1), _softmax(-pk, axis=-1)], axis=-1)
        kv = torch.einsum("bhsf,bhsd->bhfd", phi_k, v)
        z  = torch.einsum("bhsf->bhf", phi_k)
        num = torch.einsum("bhqf,bhfd->bhqd", phi_q, kv)
        den = torch.einsum("bhqf,bhf->bhq", phi_q, z)[..., None] + 1e-6
        o = num / den
        return (lambda x, *d: x.permute(*d))(o, 0, 2, 1, 3).reshape(B, S, D) @ wo

    x = A_x
    x = x + _A_ref(_layernorm(x, axis=-1), A_wqkv, A_wo)
    x = x + _B_ref(_layernorm(x, axis=-1), B_wqkv, B_w_phi, B_wo)
    x = x + _A_ref(_layernorm(x, axis=-1), A_wqkv, A_wo)
    x = x + _B_ref(_layernorm(x, axis=-1), B_wqkv, B_w_phi, B_wo)
    return x
```

```python
KNAME = "interleave_layers__sliding_local_dilated__linear_kernel_hedgehog__prompt_kernel"

HEADER_COMMENT = """; Kernarg layout for this problem (80 bytes, ptrs only, base s[0:1]):
"""


class Asm:
    def __init__(self):
        self.lines = []
        self.nlabel = 0

    def __call__(self, s):
        for l in s.split("\n"):
            l = l.strip()
            if l:
                self.lines.append(l if l.endswith(":") else "    " + l)

    def c(self, s):
        self.lines.append("    ; " + s)

    def label(self, base="L"):
        self.nlabel += 1
        return f"{base}_{self.nlabel}"

    def text(self):
        return "\n".join(self.lines) + "\n"


def vr(base, n=1):
    return f"v{base}" if n == 1 else f"v[{base}:{base+n-1}]"


def ar(base, n=1):
    return f"a{base}" if n == 1 else f"a[{base}:{base+n-1}]"


def sr(base, n=1):
    return f"s{base}" if n == 1 else f"s[{base}:{base+n-1}]"


def reg(r, n=1):
    if r >= 256:
        return ar(r - 256, n)
    assert r + n <= 256, (r, n)
    return vr(r, n)


def wrap(kernels, launches):
    out = [HEADER_COMMENT.rstrip("\n")]
    if len(launches) == 1 and launches[0][0] == KNAME:
        n, g, b, l = launches[0]
        out.append(f"; @launch grid=({g},1,1) block=({b},1,1) lds={l}")
    else:
        for n, g, b, l in launches:
            out.append(f"; @launch kernel={n} grid=({g},1,1) block=({b},1,1) lds={l}")
    out.append('.amdgcn_target "amdgcn-amd-amdhsa--gfx950"')
    out.append(".text")
    for name, body, nv, ao, ns in kernels:
        out.append(f".globl {name}\n.p2align 8\n.type {name},@function\n{name}:")
        out.append(body.rstrip("\n"))
    out.append('.section .rodata,"a"')
    for name, body, nv, ao, ns in kernels:
        out.append(f""".p2align 6
.amdhsa_kernel {name}
  .amdhsa_next_free_vgpr {nv}
  .amdhsa_next_free_sgpr {ns}
  .amdhsa_accum_offset {ao}
  .amdhsa_group_segment_fixed_size 0
  .amdhsa_kernarg_size 80
  .amdhsa_user_sgpr_count 2
  .amdhsa_user_sgpr_kernarg_segment_ptr 1
  .amdhsa_system_sgpr_workgroup_id_x 1
.end_amdhsa_kernel""")
    return "\n".join(out) + "\n"
```

```python
import re

TRANS = ("v_exp_f32", "v_log_f32", "v_rcp_f32", "v_rsq_f32", "v_sqrt_f32", "v_sin_f32", "v_cos_f32")
REG_RE = re.compile(r"(?<![\w.])([vas])(?:(\d+)|\[(\d+):(\d+)\])(?![\w])")


def regs_of(tok):
    out = []
    for m in REG_RE.finditer(tok):
        k = m.group(1)
        lo = int(m.group(2) if m.group(2) is not None else m.group(3))
        hi = int(m.group(2) if m.group(2) is not None else m.group(4))
        for r in range(lo, hi + 1):
            out.append(r if k == "v" else (256 + r if k == "a" else ("s", r)))
    for name in ("vcc", "exec", "m0"):
        if re.search(r"(?<![\w])" + name + r"(_lo|_hi)?(?![\w])", tok):
            out.append(name)
    return out


def isv(r):
    return isinstance(r, int)


class Inst:
    __slots__ = ("text", "op", "kind", "rd", "wr", "A", "B", "C", "D", "dpp", "wide", "xrd", "xwr", "waitregs", "nws", "passes")

    def __init__(self, text, xrd=(), xwr=()):
        self.text = text
        self.xrd = set(xrd)
        self.xwr = set(xwr)
        self.rd = set()
        self.wr = set()
        self.A = self.B = self.C = self.D = None
        self.dpp = False
        self.wide = False
        self.waitregs = None
        self.nws = 1
        self.passes = 0
        t = text.split(";")[0].strip()
        if t.endswith(":") or t.startswith("."):
            self.op = ""
            self.kind = "label"
            self.nws = 0
            return
        if not t:
            self.op = ""
            self.kind = "comment"
            self.nws = 0
            return
        parts = t.split(None, 1)
        op = self.op = parts[0]
        ops = [x.strip() for x in parts[1].split(",")] if len(parts) > 1 else []
        R = [regs_of(x) for x in ops]
        flat = lambda l: set(r for x in l for r in x)
        if op.startswith("v_mfma"):
            self.kind = "mfma"
            self.D, self.A, self.B, self.C = R[0], R[1], R[2], R[3]
            self.wr = set(R[0])
            self.rd = flat(R[1:]) | {"exec"}
            self.passes = 8 if "32x32x16" in op else 4
            assert "16x16x32" in op or "32x32x16" in op, op
        elif op.startswith("v_"):
            base = op.replace("_e32", "").replace("_e64", "").replace("_dpp", "")
            self.kind = "trans" if base in TRANS else "valu"
            self.dpp = "_dpp" in op or "row_" in t or "quad_perm" in t
            if op.startswith("v_permlane"):
                self.kind = "swap"
                self.wr = flat(R)
                self.rd = flat(R)
            else:
                self.wr = set(R[0])
                self.rd = flat(R[1:])
                if op.startswith(("v_fmac", "v_dot2c", "v_pk_fmac", "v_writelane")) or self.dpp:
                    self.rd |= set(R[0])
                assert not op.startswith(("v_cmpx", "v_add_co", "v_addc", "v_sub_co", "v_div_scale")), op
            self.rd.add("exec")
        elif op.startswith("ds_"):
            if op.startswith(("ds_read", "ds_bpermute", "ds_swizzle", "ds_permute")):
                self.kind = "dsr"
                self.wr = set(R[0])
                self.rd = flat(R[1:])
            else:
                self.kind = "dsw"
                self.rd = flat(R)
            self.rd.add("exec")
        elif op.startswith("buffer_load"):
            if re.search(r"\blds\b", t):
                self.kind = "dma"
                self.rd = flat(R) | {"m0"}
            else:
                self.kind = "vld"
                self.wr = set(R[0])
                self.rd = flat(R[1:])
            self.rd.add("exec")
        elif op.startswith(("buffer_store", "buffer_atomic")):
            self.kind = "vst"
            self.rd = flat(R) | {"exec"}
            self.wide = op.endswith(("x3", "x4"))
            self.D = R[0]
            assert not (op.startswith("buffer_atomic") and "sc0" in t)
        elif op == "s_waitcnt":
            self.kind = "wait"
        elif op == "s_barrier":
            self.kind = "barrier"
        elif op == "s_nop":
            self.kind = "nop"
            self.nws = int(ops[0]) + 1
        elif op.startswith(("s_cbranch", "s_branch", "s_endpgm", "s_setpc", "s_swappc")):
            self.kind = "branch"
            self.rd = {"scc", "vcc", "exec"}
        elif op.startswith(("s_load", "s_memtime", "s_memrealtime")):
            self.kind = "smem"
            self.wr = set(R[0])
            self.rd = flat(R[1:])
        elif op in ("s_sleep", "s_setprio"):
            self.kind = "salu"
        elif op.startswith("s_"):
            self.kind = "salu"
            if op.startswith(("s_cmp", "s_bitcmp")):
                self.rd = flat(R)
                self.wr = {"scc"}
            else:
                self.wr = set(R[0])
                self.rd = flat(R[1:])
                if not op.startswith(("s_mov", "s_mul_i32", "s_cselect", "s_getpc", "s_mul_hi", "s_getreg")):
                    self.wr.add("scc")
                if op.startswith(("s_cselect", "s_addc", "s_subb")):
                    self.rd.add("scc")
                if op.startswith(("s_addk", "s_mulk")):
                    self.rd |= set(R[0])
                if "saveexec" in op:
                    self.rd.add("exec")
                    self.wr.add("exec")
        else:
            raise ValueError("unknown instruction: " + text)


ISSUE = {"valu": 4, "trans": 8, "swap": 8, "mfma": 8, "dsr": 4, "dsw": 8, "vld": 8, "vst": 8, "dma": 8, "salu": 4, "nop": 4, "smem": 4}


def latency(p, c):
    k = p.kind
    if k == "mfma":
        if c.kind == "mfma" and c.C == p.D and not (set(p.D) & (set(c.A) | set(c.B))):
            return 4 * p.passes
        return 4 * p.passes + 28
    if k in ("valu", "swap"):
        if c.kind in ("mfma", "swap") or c.dpp:
            return ISSUE[k] + 8
        return ISSUE[k] + 4
    if k == "trans":
        return 16
    if k == "dsr":
        return 110
    if k == "dsw":
        return 16
    if k == "vld":
        return 800
    return 4


def schedule(insts):
    n = len(insts)
    preds = [dict() for _ in range(n)]
    lastw = {}
    readers = {}
    for i, x in enumerate(insts):
        assert x.kind not in ("label", "branch", "wait", "barrier", "comment") and x.waitregs is None, x.text
        rd = set(x.rd) | x.xrd
        wr = set(x.wr) | x.xwr
        if x.kind in ("dsr", "dsw") and not (x.xrd or x.xwr) and not x.op.startswith(("ds_bpermute", "ds_swizzle")):
            wr.add("ldsall")
        if x.kind in ("vld", "vst", "dma"):
            wr.add("vmemorder")
        for r in rd:
            if r in lastw:
                j = lastw[r]
                preds[i][j] = max(preds[i].get(j, 0), latency(insts[j], x))
        for r in wr:
            if r in lastw:
                j = lastw[r]
                l = latency(insts[j], x) if (isv(r) and insts[j].kind in ("mfma", "dsr", "vld")) else 1
                if insts[j].kind == "mfma" and x.kind == "mfma":
                    l = 4 * insts[j].passes
                preds[i][j] = max(preds[i].get(j, 0), l)
            for j in readers.get(r, ()):
                if j != i:
                    l = 1
                    if insts[j].kind == "mfma" and x.kind != "mfma" and r in (insts[j].C or ()):
                        l = 20
                    if insts[j].kind == "vst" and insts[j].wide:
                        l = 16
                    preds[i][j] = max(preds[i].get(j, 0), l)
        for r in rd:
            readers.setdefault(r, []).append(i)
        for r in wr:
            lastw[r] = i
            readers[r] = []
    succs = [[] for _ in range(n)]
    for i in range(n):
        for j, l in preds[i].items():
            succs[j].append((i, l))
    prio = [0] * n
    for i in range(n - 1, -1, -1):
        prio[i] = ISSUE[insts[i].kind] + max([0] + [prio[j] + l - 0 for j, l in succs[i]])
    npred = [len(p) for p in preds]
    est = [0] * n
    ready = [i for i in range(n) if npred[i] == 0]
    now = 0
    mfree = 0
    out = []
    while ready:
        def start(i):
            s = est[i]
            if insts[i].kind == "mfma":
                s = max(s, mfree)
            return s
        can = [i for i in ready if start(i) <= now]
        if out and out[-1].op.startswith("v_pk_"):
            alt = [i for i in can if insts[i].kind != "mfma"]
            npk = [i for i in alt if not insts[i].op.startswith("v_pk_")]
            if len(alt) != len(can):
                can = npk or can
        if can:
            i = max(can, key=lambda i: (prio[i], -i))
        else:
            i = min(ready, key=lambda i: (start(i), -prio[i], i))
            now = start(i)
        ready.remove(i)
        out.append(insts[i])
        if insts[i].kind == "mfma":
            mfree = now + 4 * insts[i].passes
        for j, l in succs[i]:
            est[j] = max(est[j], now + l)
            npred[j] -= 1
            if npred[j] == 0:
                ready.append(j)
        now += ISSUE[insts[i].kind]
    assert len(out) == n
    return out, now


class Prog:
    def __init__(self):
        self.insts = []
        self.nlabel = 0
        self._blk = None
        self.est = []

    def __call__(self, s, rd=(), wr=()):
        tgt = self.insts if self._blk is None else self._blk
        for l in s.split("\n"):
            l = l.strip()
            if l:
                tgt.append(Inst(l, rd, wr))

    def add(self, inst):
        (self.insts if self._blk is None else self._blk).append(inst)

    def c(self, s):
        if self._blk is None:
            self.insts.append(Inst("; " + s))

    def label(self, base="L"):
        self.nlabel += 1
        return f"{base}_{self.nlabel}"

    def begin(self):
        assert self._blk is None
        self._blk = []

    def end(self, name=""):
        blk, self._blk = self._blk, None
        out, t = schedule(blk)
        self.est.append((name, len(out), t))
        self.insts.append(Inst(f"; --- scheduled block {name}: {len(out)} instrs, est {t} cyc"))
        self.insts.extend(out)

    def end_list(self, name=""):
        blk, self._blk = self._blk, None
        out, t = schedule(blk)
        self.est.append((name, len(out), t))
        return out

    def waitfor(self, regs):
        x = Inst("; waitfor")
        x.waitregs = set(regs)
        self.add(x)

    def finalize(self):
        return finalize(self.insts)


def waitfor_inst(regs):
    x = Inst("; waitfor")
    x.waitregs = set(regs)
    return x


def parse_wait(t):
    vm = re.search(r"vmcnt\((\d+)\)", t)
    lg = re.search(r"lgkmcnt\((\d+)\)", t)
    return (int(vm.group(1)) if vm else None, int(lg.group(1)) if lg else None)


def finalize(insts):
    out = []
    vmq = []
    lgq = []
    smem_pending = False
    pos = 0
    lw = {}
    cread = {}
    stread = {}
    nnop = 0
    lastpk = None

    def emit(x):
        nonlocal pos
        out.append(x.text if x.kind == "label" else "    " + x.text)
        pos += x.nws

    def need(q, regs):
        idx = -1
        for i, d in enumerate(q):
            if d & regs:
                idx = i
        return None if idx < 0 else len(q) - idx - 1

    def do_wait(regs):
        nonlocal vmq, lgq
        v = need(vmq, regs)
        l = need(lgq, regs)
        if v is None and l is None:
            return
        s = "s_waitcnt"
        if v is not None:
            v = min(v, 62)
            s += f" vmcnt({v})"
            vmq = vmq[len(vmq) - v:] if v else []
        if l is not None:
            if smem_pending:
                l = 0
            l = min(l, 14)
            s += f" lgkmcnt({l})"
            lgq = lgq[len(lgq) - l:] if l else []
        emit(Inst(s))

    for x in insts:
        if x.waitregs is not None:
            do_wait(x.waitregs)
            continue
        if x.kind == "comment":
            out.append("    " + x.text)
            continue
        if x.kind in ("label", "branch"):
            if x.kind == "branch" or x.text.endswith(":"):
                pend = [d for d in vmq + lgq if any(isv(r) or (isinstance(r, tuple) and r[0] == 's') for r in d)]
                assert not pend or "keep" in x.text, f"pending loads {pend[:2]} across {x.text}"
            emit(x)
            continue
        if x.kind == "wait":
            v, l = parse_wait(x.text)
            if v is not None:
                vmq = vmq[len(vmq) - v:] if (v and v < len(vmq)) else ([] if v == 0 else vmq)
            if l is not None:
                lgq = lgq[len(lgq) - l:] if (l and l < len(lgq)) else ([] if l == 0 else lgq)
                if l == 0:
                    smem_pending = False
            emit(x)
            continue
        do_wait(x.rd | x.wr)
        req = 0

        def dist(p):
            return pos - p - 1

        def want(p, n):
            nonlocal req
            req = max(req, n - dist(p))

        isvalu = x.kind in ("valu", "trans", "swap")
        ismem = x.kind in ("dsr", "dsw", "vld", "vst", "dma")
        for r in x.rd | x.wr:
            if r not in lw:
                continue
            p, w = lw[r]
            rdr = r in x.rd
            if w.kind == "mfma":
                big = {4: 8, 8: 12}[w.passes]
                if isvalu or ismem:
                    want(p, big)
                elif x.kind == "mfma":
                    if r in x.A or r in x.B:
                        want(p, big)
                    elif r in x.C and not (x.C == w.D and x.passes == w.passes):
                        want(p, big - 2)
            elif w.kind in ("valu", "trans", "swap"):
                if isv(r):
                    if rdr and x.kind == "mfma":
                        want(p, 2)
                    if rdr and (x.kind == "swap" or x.dpp):
                        want(p, 2)
                    if rdr and x.op.startswith(("v_readfirstlane", "v_readlane")):
                        want(p, 1)
                    if rdr and w.kind == "trans" and x.kind != "trans":
                        want(p, 1)
                    if w.op.startswith("v_dot2") and not (x.op == w.op and r in x.wr):
                        want(p, 3)
                else:
                    if rdr and isvalu:
                        want(p, 4 if x.op.startswith(("v_readlane", "v_writelane")) else 2)
                    if rdr and x.kind in ("vld", "vst", "dma"):
                        want(p, 5)
                    if rdr and x.kind == "salu":
                        want(p, 1)
            elif w.kind == "salu":
                if r == "m0" and x.kind == "dma":
                    want(p, 1)
        if isvalu:
            for r in x.wr:
                if r in cread:
                    want(cread[r][0], cread[r][1] - 1)
                if r in stread:
                    want(stread[r], 2)
        elif x.kind in ("dsr", "vld", "mfma"):
            for r in x.wr:
                if r in stread:
                    want(stread[r], 1)
        if x.kind == "mfma" and lastpk is not None:
            want(lastpk, 1)
        if req > 0:
            nnop += req
            emit(Inst(f"s_nop {req-1}"))
        p = pos
        emit(x)
        if x.kind in ("valu", "trans", "swap", "mfma", "salu"):
            for r in x.wr:
                lw[r] = (p, x)
        else:
            for r in x.wr:
                lw.pop(r, None)
        if x.op.startswith("v_pk_"):
            lastpk = p
        if x.kind == "mfma":
            for r in x.C:
                cread[r] = (p, x.passes)
        if x.kind == "vst" and x.wide:
            for r in x.D:
                stread[r] = p
        if x.kind in ("vld", "vst", "dma"):
            vmq.append(set(x.wr) | x.xwr)
            assert len(vmq) <= 200
        if x.kind in ("dsr", "dsw"):
            lgq.append(set(x.wr))
        if x.kind == "smem":
            smem_pending = True
            lgq.append(set(x.wr))
    return "\n".join(out) + "\n", nnop
```

```python
import sys, math
from asmlib import KNAME, wrap, vr, ar, sr, reg
from ir import Prog, Inst, waitfor_inst

MB = 1 << 20
CNT = 0
TS = 1 * MB
ST = [2 * MB + l * 256 * 1024 for l in range(4)]
CS = [3 * MB + t * 512 * 1024 for t in range(2)]
KVP = [4 * MB + i * 2 * MB for i in range(2)]
KVZ = [8 * MB + i * 128 * 1024 for i in range(2)]
WOP = [10 * MB + t * 2 * MB for t in range(2)]
WP = [14 * MB + t * 6 * MB for t in range(2)]
XF = [26 * MB + 8 * l * MB for l in range(4)]
OF = [30 * MB + 8 * l * MB for l in range(4)]
OOB = 0x80000000

sWS, sX, sOUT, sDBG, sIN, sCODE, sSRC = 4, 8, 12, 16, 20, 24, 40
sWAVE, sRG, sH, sRB, sCB, sROT1, sROT2 = 28, 29, 30, 31, 32, 33, 34
sK, sT0, sT1, sT2, sT3, sD, sPC = 35, 36, 37, 38, 39, 44, 45
sM1, sM2 = 46, 48
sWB, sWOB = 50, 51
sTSP = 52
sEXP = 54
sZ0, sZ1 = 56, 58
sP = 64
SRD = lambda s: f"s[{s}:{s+3}]"

vLANE, vLIN, vA1, vH1, vA2, vBB, vHB, vTW, vTR, vHW, vSIG, vT0, vONE, vTS, vST, vSTH = range(16)
ONES = 16
BIASP, BIASC, MASKP, MASKC = 20, 24, 28, 30
XRES = 32
CSUM = 48
BIASP0, MASKP0 = 76, 80
STAT = 82
LAND = 92
ACC = 132
ACCH = 228
TMP = 232
acc = lambda rb, cb: ACC + rb * 24 + cb * 4
A_ = 256
RING = A_ + 0
BFR = A_ + 80
PARK = [A_ + 136, A_ + 164]
WPHI = A_ + 192
REG = 49152
WO_L = 32768
LV, LK, LPHI = 0, 20480, 16384

LOG2E = 1.4426950408889634


def fhex(x):
    import struct
    return hex(struct.unpack("<I", struct.pack("<f", x))[0])


def mfma(d, a, b, c):
    cs = "0" if c is None else reg(c, 4)
    return f"v_mfma_f32_16x16x32_bf16 {reg(d,4)}, {reg(a,4)}, {reg(b,4)}, {cs}"


def rr(base, n):
    return list(range(base, base + n))


def interleave(p, mf, fills):
    n = len(mf)
    slots = [[] for _ in range(n)]
    for lo, hi, groups in fills:
        m = len(groups)
        for i, g in enumerate(groups):
            pos = lo + (i * (hi - lo + 1)) // max(m, 1)
            slots[min(pos, n - 1)].append(g)
    for i in range(n):
        p(mf[i])
        for g in slots[i]:
            for x in g:
                p.add(x if isinstance(x, Inst) else Inst(x))


class Gen:
    def __init__(self, stamps=False, rot1=16, rot2=4, D=4, D2=6, nlayers=4, final_out=True):
        self.p = Prog()
        self.stamps = stamps
        self.nst = 0
        self.stnames = []
        self.rot1, self.rot2, self.D, self.D2 = rot1, rot2, D, D2
        self.nlayers = nlayers

    def stamp(self, name):
        if not self.stamps:
            return
        p = self.p
        p(f"s_memrealtime s[{sTSP}:{sTSP+1}]\ns_memtime s[60:61]\ns_waitcnt lgkmcnt(0)\nv_writelane_b32 v{vTS}, s{sTSP}, {self.nst}\nv_writelane_b32 v255, s60, {self.nst}")
        self.stnames.append(name)
        self.nst += 1

    def srd(self, s, lo, size):
        self.p(f"s_mov_b32 s{s}, s{lo}\ns_mov_b32 s{s+1}, s{lo+1}\ns_mov_b32 s{s+2}, {hex(size)}\ns_mov_b32 s{s+3}, 0x20000")

    def src_srd(self, off):
        self.p(f"s_add_u32 s{sSRC}, s{sWS}, {hex(off)}\ns_addc_u32 s{sSRC+1}, s{sWS+1}, 0")

    def signal(self, srd, base, nl_sgpr=None, nl=32):
        p = self.p
        L = p.label("Lsig")
        p(f"s_cmp_lg_u32 s{sWAVE}, 0\ns_cbranch_scc1 {L}")
        if nl_sgpr is not None:
            p(f"s_mov_b32 exec_hi, s{nl_sgpr}")
        else:
            p(f"s_mov_b32 exec_lo, {hex((1 << nl) - 1)}\ns_mov_b32 exec_hi, 0")
        p(f"s_mov_b32 s{sT0}, {hex(base)}")
        p(f"buffer_atomic_add v{vONE}, v{vSIG}, {SRD(srd)}, s{sT0} offen sc1")
        p("s_mov_b64 exec, -1")
        p(f"{L}:")

    def poll(self, srd, base, exp, allwaves=False, pre=False):
        p = self.p
        L, E = p.label("Lpoll"), p.label("Lpe")
        if not allwaves:
            p(f"s_cmp_lg_u32 s{sWAVE}, 0\ns_cbranch_scc1 {E}")
        p(f"s_mov_b32 s{sT0}, {hex(base)}\ns_mov_b32 s{sT1}, 0")
        if pre:
            p(f"v_cmp_gt_u32 vcc, {exp}, v{vT0}\ns_cbranch_vccz {E}")
        p(f"{L}:")
        p(f"buffer_load_dword v{vT0}, v{vSIG}, {SRD(srd)}, s{sT0} offen sc1")
        p(f"s_add_u32 s{sT1}, s{sT1}, 1")
        p(f"v_cmp_gt_u32 vcc, {exp}, v{vT0}")
        p(f"s_cbranch_vccz {E}")
        p(f"s_cmp_lt_u32 s{sT1}, 0x100000\ns_cbranch_scc1 {L}")
        p(f"{E}:")

    def w_dma(self, t, c):
        g = []
        for q in range(3):
            pre = []
            if q == 0:
                pre += [f"s_lshl_b32 s{sD}, s{sWAVE}, 1", f"s_add_u32 s{sD}, s{sD}, s{sROT1}", f"s_add_u32 s{sD}, s{sD}, {8*c}",
                        f"s_and_b32 s{sD}, s{sD}, 31", f"s_mul_i32 s{sD}, s{sD}, 6144", f"s_add_u32 s{sD}, s{sD}, s{sWB}",
                        f"s_add_u32 s{sD}, s{sD}, {hex(WP[t])}",
                        f"s_mul_i32 s{sPC}, s{sWAVE}, 12288", f"s_add_u32 m0, s{sPC}, {(c%3)*REG}"]
            else:
                pre += [f"s_add_u32 s{sD}, s{sD}, 4096", "s_add_u32 m0, m0, 4096"]
            for u in range(4):
                x = Inst(f"buffer_load_dwordx4 v{vLIN}, {SRD(sWS)}, s{sD} offen offset:{u*1024} sc1 lds", xwr=[("W", c)])
                g.append((pre if u == 0 else []) + [x])
        return g

    def wo_dma(self, t, q):
        pre = [f"s_add_u32 s{sPC}, s{sWAVE}, {4*q}", f"s_add_u32 s{sD}, s{sPC}, s{sROT2}", f"s_and_b32 s{sD}, s{sD}, 31",
               f"s_lshl_b32 s{sD}, s{sD}, 12", f"s_add_u32 s{sD}, s{sD}, s{sWOB}", f"s_add_u32 s{sD}, s{sD}, {hex(WOP[t])}",
               f"s_lshl_b32 s{sPC}, s{sPC}, 12", f"s_add_u32 m0, s{sPC}, {WO_L}"]
        g = []
        for u in range(4):
            x = Inst(f"buffer_load_dwordx4 v{vLIN}, {SRD(sWS)}, s{sD} offen offset:{u*1024} sc1 lds", xwr=[("WO", q)])
            g.append((pre if u == 0 else []) + [x])
        return g

    def emit_groups(self, groups):
        for g in groups:
            for x in g:
                self.p.add(x if isinstance(x, Inst) else Inst(x))

    def setup(self):
        p = self.p
        p("s_cmp_ge_u32 s2, 256\ns_cbranch_scc1 L_end")
        p(f"s_load_dwordx16 s[{sP}:{sP+15}], s[0:1], 0\ns_load_dwordx4 s[{sP+16}:{sP+19}], s[0:1], 64")
        p(f"s_getpc_b64 s[{sCODE}:{sCODE+1}]")
        p(f"v_lshrrev_b32 v1, 6, v0\nv_and_b32 v{vLANE}, 63, v0\nv_readfirstlane_b32 s{sWAVE}, v1")
        if self.stamps:
            p(f"v_mov_b32 v{vTS}, 0\nv_mov_b32 v255, 0")
        p(f"s_and_b32 s{sT0}, s2, 7\ns_lshr_b32 s{sT1}, s2, 3")
        p(f"s_and_b32 s{sT2}, s{sT1}, 3\ns_lshr_b32 s{sT3}, s{sT1}, 2")
        p(f"s_and_b32 s{sRG}, s{sT0}, 1\ns_lshl_b32 s{sCB}, s{sRG}, 3\ns_lshl_b32 s{sRG}, s{sRG}, 2\ns_add_u32 s{sRG}, s{sRG}, s{sT2}")
        p(f"s_add_u32 s{sCB}, s{sCB}, s{sT3}")
        p(f"s_lshr_b32 s{sT0}, s{sT0}, 1\ns_lshl_b32 s{sH}, s{sT0}, 3\ns_add_u32 s{sH}, s{sH}, s{sT3}")
        p(f"s_lshl_b32 s{sRB}, s{sT0}, 2\ns_add_u32 s{sRB}, s{sRB}, s{sT2}")
        p(f"s_mul_i32 s{sROT1}, s{sT3}, {self.rot1}\ns_and_b32 s{sROT1}, s{sROT1}, 31")
        p(f"s_mul_i32 s{sROT2}, s{sT3}, {self.rot2}\ns_and_b32 s{sROT2}, s{sROT2}, 31")
        p(f"v_lshlrev_b32 v{vLIN}, 4, v{vLANE}")
        g, j = TMP + 1, TMP + 2
        p(f"v_lshrrev_b32 v{g}, 4, v{vLANE}\nv_and_b32 v{j}, 15, v{vLANE}")
        self.xrow_addr(TMP, g, j)
        p(f"v_lshrrev_b32 v{TMP+3}, 3, v{vLANE}\nv_and_b32 v{TMP+4}, 7, v{vLANE}\nv_lshlrev_b32 v{TMP+4}, 4, v{TMP+4}")
        p(f"v_lshl_add_u32 v{TMP+5}, v{TMP+3}, 11, v{TMP+4}")
        p(f"v_mul_u32_u24 v{TMP+3}, 6144, v{TMP+3}\nv_add_u32 v{TMP+3}, v{TMP+3}, v{TMP+4}")
        p("s_waitcnt lgkmcnt(0)")
        self.stamp("start")
        self.srd(sX, sP + 0, 4 * MB)
        p(f"s_mov_b32 s{sT0}, 0x10000")
        for b in range(2):
            for hf in range(2):
                p(f"buffer_load_dwordx4 {vr(XRES+8*b+4*hf,4)}, v{TMP}, {SRD(sX)}, {'s%d'%sT0 if b else 0} offen offset:{64*hf}")
        self.srd(sIN, sP + 2, 6 * MB)
        self.raw_wqkv(0)
        self.srd(sWS, sP + 18, 256 * MB)
        self.srd(sDBG, sP + 16, 256)
        self.srd(sOUT, sP + 14, 4 * MB)
        p(f"s_mov_b32 s{sSRC+2}, {hex(4*MB)}\ns_mov_b32 s{sSRC+3}, 0x20000")
        self.src_srd(XF[0])
        p(f"s_mov_b32 s{sCODE+2}, CODE_BYTES\ns_mov_b32 s{sCODE+3}, 0x20000")
        p(f"s_lshr_b32 s{sT0}, s2, 3\ns_lshl_b32 s{sT0}, s{sT0}, 2\ns_add_u32 s{sT0}, s{sT0}, s{sWAVE}\ns_lshl_b32 s{sT0}, s{sT0}, 10")
        p(f"buffer_load_dword v{TMP+6}, v{vLIN}, {SRD(sCODE)}, s{sT0} offen")
        z = TMP + 8
        for i in range(4):
            p(f"v_mov_b32 v{z+i}, 0")
        p(f"v_lshrrev_b32 v{vT0}, 3, v{vLANE}\nv_lshlrev_b32 v{vT0}, 16, v{vT0}\nv_add_u32 v{vT0}, v{vT0}, v{TMP+4}")
        p(f"s_mul_i32 s{sT0}, s{sWAVE}, {3*65536}\ns_lshl_b32 s{sT1}, s2, 8\ns_add_u32 s{sT0}, s{sT0}, s{sT1}")
        p("s_mov_b32 exec_lo, 0xffffff\ns_mov_b32 exec_hi, 0")
        p(f"buffer_store_dwordx4 {vr(z,4)}, v{vT0}, {SRD(sWS)}, s{sT0} offen sc1")
        p("s_mov_b64 exec, -1")
        self.consts(g, j)

    def xrow_addr(self, d, g, j):
        p = self.p
        p(f"s_and_b32 s{sT0}, s{sRB}, 7\ns_lshl_b32 s{sT0}, s{sT0}, 7\ns_lshl_b32 s{sT1}, s{sWAVE}, 5\ns_add_u32 s{sT0}, s{sT0}, s{sT1}")
        p(f"s_lshl_b32 s{sT0}, s{sT0}, 1\ns_lshr_b32 s{sT1}, s{sRB}, 3\ns_add_u32 s{sT0}, s{sT0}, s{sT1}\ns_lshl_b32 s{sT0}, s{sT0}, 11")
        p(f"s_lshl_b32 s{sT1}, s{sCB}, 7\ns_add_u32 s{sT0}, s{sT0}, s{sT1}")
        p(f"v_lshl_add_u32 v{d}, v{j}, 12, s{sT0}\nv_lshl_add_u32 v{d}, v{g}, 4, v{d}")

    def raw_wqkv(self, stage):
        p = self.p
        p(f"s_lshr_b32 s{sT0}, s2, 4\ns_lshl_b32 s{sT0}, s{sT0}, 2\ns_add_u32 s{sT0}, s{sT0}, s{sWAVE}\ns_mul_i32 s{sT0}, s{sT0}, {16*6144}")
        p(f"s_and_b32 s{sT1}, s2, 15\ns_lshl_b32 s{sT1}, s{sT1}, 7\ns_add_u32 s{sT0}, s{sT0}, s{sT1}")
        p(f"s_lshl_b32 s{sT1}, s{sWAVE}, 11")
        for part in range(3):
            for rgp in range(2):
                p(f"s_add_u32 s{sT2}, s{sT0}, {part*2048 + rgp*8*6144}\ns_add_u32 m0, s{sT1}, {stage + part*8192 + rgp*1024}")
                p(f"buffer_load_dwordx4 v{TMP+3}, {SRD(sIN)}, s{sT2} offen lds", wr=[("raw", stage)])

    def raw_wo(self, stage):
        p = self.p
        p(f"s_lshr_b32 s{sT0}, s2, 4\ns_lshl_b32 s{sT0}, s{sT0}, 2\ns_add_u32 s{sT0}, s{sT0}, s{sWAVE}\ns_lshl_b32 s{sT0}, s{sT0}, 15")
        p(f"s_and_b32 s{sT1}, s2, 15\ns_lshl_b32 s{sT1}, s{sT1}, 7\ns_add_u32 s{sT0}, s{sT0}, s{sT1}")
        p(f"s_lshl_b32 s{sT1}, s{sWAVE}, 11")
        for rgp in range(2):
            p(f"s_add_u32 s{sT2}, s{sT0}, {rgp*8*2048}\ns_add_u32 m0, s{sT1}, {stage + rgp*1024}")
            p(f"buffer_load_dwordx4 v{TMP+5}, {SRD(sIN)}, s{sT2} offen lds", wr=[("raw", stage)])

    def consts(self, g, j):
        p = self.p
        t, u = TMP + 12, TMP + 13
        for i in range(4):
            p(f"v_mov_b32 v{ONES+i}, 0x3f803f80")
        p(f"v_mov_b32 v{vONE}, 1")
        p(f"s_mov_b32 s{sM1}, 0xaaaaaaaa\ns_mov_b32 s{sM1+1}, 0xaaaaaaaa\ns_mov_b32 s{sM2}, 0xcccccccc\ns_mov_b32 s{sM2+1}, 0xcccccccc")
        p(f"s_mov_b32 s{sZ0}, 0x11111111\ns_mov_b32 s{sZ0+1}, 0x11111111\ns_mov_b32 s{sZ1}, 0x22222222\ns_mov_b32 s{sZ1+1}, 0x22222222")
        p(f"s_mul_i32 s{sWB}, s{sH}, {192*1024}\ns_lshl_b32 s{sWOB}, s{sCB}, 17")
        p(f"s_lshl_b32 s{sT0}, s{sRG}, 2\ns_add_u32 s{sT0}, s{sT0}, s{sWAVE}\ns_lshl_b32 s{sT1}, s{sT0}, 17\nv_add_u32 v{vA1}, s{sT1}, v{vLIN}")
        p(f"v_lshlrev_b32 v{t}, 9, v{g}\nv_lshl_add_u32 v{t}, v{j}, 3, v{t}")
        p(f"s_lshl_b32 s{sT1}, s{sT0}, 13\nv_add_u32 v{vST}, s{sT1}, v{t}")
        p(f"s_and_b32 s{sT2}, s{sRG}, 3\ns_cmp_eq_u32 s{sT2}, 0\ns_cselect_b32 s{sT2}, 0, {hex(128*1024-3072)}\ns_cselect_b32 s{sT3}, 0, 2048")
        p(f"s_lshl_b32 s{sT1}, s{sRG}, 19\ns_sub_u32 s{sT1}, s{sT1}, s{sT2}\nv_add_u32 v{vH1}, s{sT1}, v{vLIN}")
        p(f"v_mov_b32 v{u}, {hex(OOB)}\nv_cmp_gt_u32 vcc, 8, v{j}\nv_cndmask_b32 v{vH1}, v{vH1}, v{u}, vcc")
        p(f"s_lshl_b32 s{sT1}, s{sRG}, 15\ns_sub_u32 s{sT1}, s{sT1}, s{sT3}\nv_add_u32 v{vSTH}, s{sT1}, v{t}")
        p(f"s_lshl_b32 s{sT0}, s{sRB}, 1\ns_lshr_b32 s{sT1}, s{sWAVE}, 1\ns_add_u32 s{sT0}, s{sT0}, s{sT1}\ns_lshl_b32 s{sT0}, s{sT0}, 17")
        p(f"s_and_b32 s{sT1}, s{sWAVE}, 1\ns_lshl_b32 s{sT1}, s{sT1}, 11\ns_add_u32 s{sT0}, s{sT0}, s{sT1}\nv_add_u32 v{vA2}, s{sT0}, v{vLIN}")

        def slot(d, s_, g_):
            p(f"v_and_b32 v{t}, 1, v{g_}\nv_lshl_add_u32 v{t}, v{t}, 3, v{s_}\nv_and_b32 v{t}, 15, v{t}")
            p(f"v_lshrrev_b32 v{u}, 1, v{g_}\nv_lshl_add_u32 v{t}, v{u}, 4, v{t}")
            p(f"v_lshrrev_b32 v{u}, 3, v{s_}\nv_lshl_add_u32 v{t}, v{u}, 5, v{t}\nv_lshlrev_b32 v{d}, 3, v{t}")
        slot(vTW, j, g)
        p(f"v_lshrrev_b32 v{TMP+14}, 2, v{vLANE}\nv_and_b32 v{TMP+15}, 3, v{vLANE}")
        slot(vTR, TMP + 14, TMP + 15)
        p(f"s_and_b32 s{sT0}, s{sWAVE}, 1\ns_lshl_b32 s{sT1}, s{sT0}, 3\ns_add_u32 s{sT1}, s{sT1}, {LK}\ns_lshl_b32 s{sT0}, s{sT0}, 9")
        p(f"v_add_u32 v{t}, s{sT1}, v{vLIN}\nv_add_u32 v{u}, s{sT0}, v{vTW}")
        p(f"s_cmp_lt_u32 s{sWAVE}, 2\ns_cselect_b64 vcc, -1, 0\nv_cndmask_b32 v{vHW}, v{u}, v{t}, vcc")

    def attn_consts(self):
        p = self.p
        g, j, d, t, big = TMP + 1, TMP + 2, TMP + 3, TMP + 4, TMP + 5
        p(f"v_lshrrev_b32 v{g}, 4, v{vLANE}\nv_and_b32 v{j}, 15, v{vLANE}\nv_lshlrev_b32 v{g}, 2, v{g}\nv_sub_u32 v{g}, v{g}, v{j}")
        p(f"v_mov_b32 v{big}, {fhex(-1e30)}")
        for r in range(4):
            half = "0xffff0000" if r & 1 else "0xffff"
            for (bias, mask, isC) in ((BIASC, MASKC, True), (BIASP, MASKP, False)):
                if isC:
                    p(f"v_add_u32 v{d}, {r+7}, v{g}\nv_cmp_gt_u32 vcc, 8, v{d}")
                else:
                    p(f"v_add_u32 v{d}, {r}, v{g}\nv_cmp_le_i32 vcc, 9, v{d}")
                p(f"v_cndmask_b32 v{bias+r}, v{big}, 0, vcc")
                p(f"v_mov_b32 v{t}, {half}\nv_cndmask_b32 v{t}, 0, v{t}, vcc")
                if r & 1:
                    p(f"v_or_b32 v{mask+r//2}, v{mask+r//2}, v{t}")
                else:
                    p(f"v_mov_b32 v{mask+r//2}, v{t}")
        p(f"s_and_b32 s{sT0}, s{sRG}, 3\ns_or_b32 s{sT0}, s{sT0}, s{sWAVE}\ns_cmp_eq_u32 s{sT0}, 0\ns_cselect_b64 vcc, -1, 0")
        for r in range(4):
            p(f"v_cndmask_b32 v{BIASP0+r}, v{BIASP+r}, v{big}, vcc")
        for r in range(2):
            p(f"v_cndmask_b32 v{MASKP0+r}, v{MASKP+r}, 0, vcc")

    def repack_wqkv(self, t, stage):
        p = self.p
        a, a2, so = TMP + 16, TMP + 17, TMP + 18
        F = A_ + 0
        p(f"v_lshrrev_b32 v{a}, 4, v{vLANE}\nv_lshlrev_b32 v{a}, 10, v{a}\nv_bfe_u32 v{a2}, v{vLANE}, 2, 2\nv_lshl_add_u32 v{a}, v{a2}, 7, v{a}")
        p(f"v_and_b32 v{a2}, 3, v{vLANE}\nv_lshl_add_u32 v{a}, v{a2}, 3, v{a}")
        p(f"s_lshr_b32 s{sT0}, s{sWAVE}, 1\ns_lshl_b32 s{sT0}, s{sT0}, 6\ns_and_b32 s{sT1}, s{sWAVE}, 1")
        p(f"s_mul_i32 s{sT2}, s{sT1}, 8224\ns_add_u32 s{sT2}, s{sT2}, s{sT0}\ns_mul_i32 s{sT3}, s{sT1}, 16352\ns_add_u32 s{sT3}, s{sT3}, s{sT0}")
        p(f"v_add_u32 v{a2}, s{sT3}, v{a}\nv_add_u32 v{a}, s{sT2}, v{a}")
        p(f"s_and_b32 s{sT2}, s2, 15\ns_lshl_b32 s{sT2}, s{sT2}, 1\ns_lshr_b32 s{sT0}, s{sWAVE}, 1\ns_add_u32 s{sT2}, s{sT2}, s{sT0}")
        p(f"s_lshr_b32 s{sT0}, s2, 4")
        p(f"s_mul_i32 s{sT3}, s{sT2}, {192*1024}\ns_mul_i32 s{sD}, s{sT0}, 12288\ns_add_u32 s{sT3}, s{sT3}, s{sD}")
        p(f"s_mul_i32 s{sD}, s{sT1}, 3072\ns_add_u32 s{sT3}, s{sT3}, s{sD}\ns_add_u32 s{sT3}, s{sT3}, {hex(WP[t])}\ns_add_u32 s{sD}, s{sT3}, 6144")
        p(f"s_mul_i32 s{sT2}, s{sT2}, 6\ns_mul_i32 s{sT1}, s{sT1}, 3\ns_add_u32 s{sT2}, s{sT2}, s{sT1}\ns_lshl_b32 s{sT2}, s{sT2}, 11")
        p(f"s_lshl_b32 s{sT0}, s{sT0}, 7\ns_add_u32 s{sT2}, s{sT2}, s{sT0}\ns_add_u32 s{sT2}, s{sT2}, {hex(CS[t])}\ns_add_u32 s{sT1}, s{sT2}, 4096")
        self.dup_addr(so)
        offs = [(a, 0), (a2, 32), (a, 8192)]
        for i in range(3):
            for tt in range(2):
                for pp in range(2):
                    p(f"ds_read_b64_tr_b16 {reg(F+(i*2+tt)*4+2*pp,2)}, v{offs[i][0]} offset:{stage + offs[i][1] + (32*tt+4*pp)*128}")
        for i in range(3):
            for tt in range(2):
                p(f"buffer_store_dwordx4 {reg(F+(i*2+tt)*4,4)}, v{vLIN}, {SRD(sWS)}, s{sD if tt else sT3} offen offset:{i*1024} sc1", wr=["crit"])
        for tt in range(2):
            for i in range(3):
                p(mfma(LAND + 4 * i, F + (i * 2 + tt) * 4, ONES, LAND + 4 * i if tt else None))
        for i in range(3):
            p(f"buffer_store_dwordx4 {vr(LAND+4*i,4)}, v{so}, {SRD(sWS)}, s{sT1 if i == 2 else sT2} offen offset:{(i&1)*2048} sc1", wr=["crit"])

    def dup_addr(self, d):
        p = self.p
        p(f"v_lshrrev_b32 v{d}, 4, v{vLANE}\nv_lshlrev_b32 v{d}, 4, v{d}\nv_and_b32 v{vT0}, 15, v{vLANE}\nv_lshl_add_u32 v{d}, v{vT0}, 6, v{d}")
        p(f"v_cmp_gt_u32 vcc, 2, v{vT0}\nv_mov_b32 v{vT0}, {hex(OOB)}\nv_cndmask_b32 v{d}, v{vT0}, v{d}, vcc")

    def repack_wo(self, t, stage):
        p = self.p
        a, a2 = TMP + 16, TMP + 17
        F = A_ + 32 + 8 * t
        p(f"v_lshrrev_b32 v{a}, 2, v{vLANE}\nv_lshlrev_b32 v{a}, 7, v{a}\nv_and_b32 v{a2}, 3, v{vLANE}\nv_lshl_add_u32 v{a}, v{a2}, 4, v{a}")
        p(f"s_lshr_b32 s{sT0}, s{sWAVE}, 1\ns_lshl_b32 s{sT0}, s{sT0}, 12\ns_and_b32 s{sT1}, s{sWAVE}, 1\ns_lshl_b32 s{sT1}, s{sT1}, 6\ns_add_u32 s{sT0}, s{sT0}, s{sT1}")
        p(f"v_add_u32 v{a}, s{sT0}, v{a}")
        p(f"s_and_b32 s{sT0}, s2, 15\ns_lshl_b32 s{sT0}, s{sT0}, 17\ns_lshr_b32 s{sT1}, s2, 4\ns_lshl_b32 s{sT1}, s{sT1}, 13\ns_add_u32 s{sT0}, s{sT0}, s{sT1}")
        p(f"s_lshl_b32 s{sT1}, s{sWAVE}, 11\ns_add_u32 s{sT0}, s{sT0}, s{sT1}\ns_add_u32 s{sT0}, s{sT0}, {hex(WOP[t])}")
        for i in range(2):
            for pp in range(2):
                p(f"ds_read_b64_tr_b16 {reg(F+4*i+2*pp,2)}, v{a} offset:{stage + 8*i + pp*2048}")
        for i in range(2):
            p(f"buffer_store_dwordx4 {reg(F+4*i,4)}, v{vLIN}, {SRD(sWS)}, s{sT0} offen offset:{i*1024} sc1")

    def phase0(self):
        p = self.p
        self.setup()
        self.k2_store(0, sched=False)
        p.waitfor([("raw", 0), TMP + 6])
        p("s_barrier")
        self.stamp("p0_raw")
        self.repack_wqkv(0, 0)
        S_B, S_AO, S_BO, S_PHI = 24576, 49152, 57344, 65536
        self.srd(sIN, sP + 8, 6 * MB)
        self.raw_wqkv(S_B)
        self.srd(sIN, sP + 4, 2 * MB)
        self.raw_wo(S_AO)
        self.srd(sIN, sP + 12, 2 * MB)
        self.raw_wo(S_BO)
        self.srd(sIN, sP + 10, 65536)
        p(f"s_and_b32 s{sT0}, s{sWAVE}, 1\ns_lshl_b32 s{sT0}, s{sT0}, 10\ns_add_u32 m0, s{sT0}, {S_PHI}\ns_lshl_b32 s{sT1}, s{sH}, 11\ns_add_u32 s{sT0}, s{sT0}, s{sT1}")
        p(f"buffer_load_dwordx4 v{vLIN}, {SRD(sIN)}, s{sT0} offen lds")
        p(f"s_and_b32 s{sT0}, s2, 31\ns_lshl_b32 s{sT0}, s{sT0}, 2\nv_mov_b32 v{vSIG}, s{sT0}")
        p.waitfor(["crit"])
        p("s_barrier")
        self.stamp("p0_ack")
        self.signal(sDBG, 0, nl=1)
        self.attn_consts()
        p("s_waitcnt vmcnt(0)\ns_barrier")
        self.stamp("p0_raw2")
        self.repack_wqkv(1, S_B)
        self.repack_wo(0, S_AO)
        self.repack_wo(1, S_BO)
        a, a2 = TMP + 16, TMP + 17
        p(f"v_lshrrev_b32 v{a}, 2, v{vLANE}\nv_lshlrev_b32 v{a}, 6, v{a}\nv_and_b32 v{a2}, 3, v{vLANE}\nv_lshl_add_u32 v{a}, v{a2}, 3, v{a}\nv_add_u32 v{a}, {S_PHI}, v{a}")
        for fb in range(2):
            for pp in range(2):
                p(f"ds_read_b64_tr_b16 {reg(WPHI+4*fb+2*pp,2)}, v{a} offset:{fb*32 + pp*1024}")
        p("s_waitcnt lgkmcnt(0)")
        p(f"v_mov_b32 v{TMP}, v{vSIG}\nv_and_b32 v{vSIG}, 31, v{vLANE}\nv_lshlrev_b32 v{vSIG}, 2, v{vSIG}")
        self.poll(sDBG, 0, 8)
        p("s_waitcnt vmcnt(0)\ns_barrier")
        self.stamp("G1")
        p(f"v_mov_b32 v{vSIG}, v{TMP}")
        self.signal(sDBG, 128, nl=1)

    def k2_store(self, l, sched=True):
        p = self.p
        so = TMP + 20
        p(f"s_lshl_b32 s{sT0}, s{sCB}, 13\ns_add_u32 s{sT0}, s{sT0}, {hex(XF[l])}\ns_add_u32 s{sT1}, s{sT0}, 4096")
        p(f"s_lshl_b32 s{sT2}, s{sRB}, 2\ns_add_u32 s{sT2}, s{sT2}, s{sWAVE}\ns_lshl_b32 s{sT2}, s{sT2}, 12\ns_lshl_b32 s{sT3}, s{sCB}, 7")
        p(f"s_add_u32 s{sT2}, s{sT2}, s{sT3}\ns_add_u32 s{sT2}, s{sT2}, {hex(ST[l])}")
        p(f"v_and_b32 v{so}, 15, v{vLANE}\nv_lshrrev_b32 v{so+1}, 2, v{so}\nv_lshrrev_b32 v{so+2}, 4, v{vLANE}\nv_cmp_eq_u32 vcc, v{so+1}, v{so+2}")
        p(f"v_lshlrev_b32 v{so}, 3, v{so}\nv_mov_b32 v{so+1}, {hex(OOB)}\nv_cndmask_b32 v{so}, v{so+1}, v{so}, vcc")
        for b in range(2):
            for hf in range(2):
                p(f"buffer_store_dwordx4 {vr(XRES+8*b+4*hf,4)}, v{vA2}, {SRD(sWS)}, s{sT1 if hf else sT0} offen offset:{b*1024} sc1", wr=["crit"])
        for hf in range(2):
            for b in range(2):
                X = XRES + 8 * b + 4 * hf
                S, G = LAND + 8 * b, LAND + 8 * b + 4
                p(mfma(G, X, X, G if hf else None))
                p(mfma(S, ONES, X, S if hf else None))
        for b in range(2):
            S, G = LAND + 8 * b, LAND + 8 * b + 4
            p(f"v_cndmask_b32 v{G}, v{G}, v{G+1}, s[{sM1}:{sM1+1}]\nv_cndmask_b32 v{G+2}, v{G+2}, v{G+3}, s[{sM1}:{sM1+1}]")
            p(f"v_cndmask_b32 v{S+1}, v{G}, v{G+2}, s[{sM2}:{sM2+1}]")
            p(f"buffer_store_dwordx2 {vr(S,2)}, v{so}, {SRD(sWS)}, s{sT2} offen offset:{b*2048} sc1", wr=["crit"])

    def k1_main(self, l):
        p = self.p
        t = l & 1
        isA = t == 0
        D = self.D
        NA = 5 if isA else 4
        NB = 7 if isA else 6
        ring = lambda s, j: RING + (s % D) * 20 + 4 * j
        bfr = lambda s, cb: BFR + (s % 2) * 28 + 4 * cb

        def aload(s):
            g = [[f"buffer_load_dwordx4 {reg(ring(s,j),4)}, v{vA1}, {SRD(sSRC)}, s{sK} offen offset:{j*1024} sc1"] for j in range(4)]
            if isA:
                g.append([f"buffer_load_dwordx4 {reg(ring(s,4),4)}, v{vH1}, {SRD(sSRC)}, s{sK} offen sc1"])
            g[-1] += [f"s_add_u32 s{sK}, s{sK}, 4096", f"s_and_b32 s{sK}, s{sK}, 0x1ffff"]
            return g

        def bread(s):
            o = (s % 8) * 6144
            g = [[f"ds_read_b128 {reg(bfr(s,cb),4)}, v{vBB} offset:{o + cb*1024}"] for cb in range(6)]
            if isA:
                g.append([f"ds_read_b128 {reg(bfr(s,6),4)}, v{vHB} offset:{o}"])
            if s % 8 == 0:
                base = ((s // 8) % 3) * REG
                g[0] = [f"v_add_u32 v{vBB}, {base}, v{vLIN}"] + g[0]
                if isA:
                    g[1] = [f"v_add_u32 v{vHB}, s{sT3}, v{vBB}"] + g[1]
            return g

        extra = {s: [] for s in range(32)}
        dma_sched = {}
        if l == 0:
            dma_sched = {1: (0, 3), 2: (5, 11), 3: (13, 19)}
        else:
            dma_sched = {2: (0, 6), 3: (7, 14)}
        for c, (lo, hi) in dma_sched.items():
            gs = self.w_dma(t, c)
            for i, g in enumerate(gs):
                extra[lo + (i * (hi - lo + 1)) // len(gs)].append(g)
        stl = []
        for b in range(NA):
            for jj in range(4):
                va, off = (vST, b * 2048) if b < 4 else (vSTH, 0)
                so = sT1 if off >= 4096 else sT0
                stl.append([f"buffer_load_dwordx2 {vr(LAND+8*b+2*jj,2)}, v{va}, {SRD(sWS)}, s{so} offen offset:{(off & 4095) + jj*128} sc1"])
        stl[0] = [f"s_mov_b32 s{sT0}, {hex(ST[l])}", f"s_mov_b32 s{sT1}, {hex(ST[l]+4096)}"] + stl[0]
        if l < 2:
            csl = []
            for cb in range(NB):
                pre = [f"s_add_u32 s{sT2}, s{sT2}, 2048"] if cb else \
                      [f"s_mul_i32 s{sT2}, s{sH}, 12288", f"s_add_u32 s{sT2}, s{sT2}, {hex(CS[t])}"]
                if cb == 6:
                    pre = [f"s_lshl_b32 s{sPC}, s{sWAVE}, 11", f"s_add_u32 s{sT2}, s{sT2}, s{sPC}", f"s_sub_u32 s{sT2}, s{sT2}, {3*2048}"]
                csl.append(pre + [f"buffer_load_dwordx4 {vr(CSUM+4*cb,4)}, v{TMP}, {SRD(sWS)}, s{sT2} offen sc1"])
            stl += csl
        if l == 0:
            stl.append([f"s_mov_b32 s{sT2}, 128", f"buffer_load_dword v{vT0}, v{vSIG}, {SRD(sDBG)}, s{sT2} offen sc1"])
        for i, g in enumerate(stl):
            extra[20 + (i * 9) // len(stl)].append(g)

        p(f"s_lshl_b32 s{sK}, s{sROT1}, 12\ns_add_u32 s{sT3}, s{sWAVE}, 2\ns_lshl_b32 s{sT3}, s{sT3}, 10")
        if l == 0:
            self.emit_groups(self.w_dma(t, 0))
        for s in range(D - 1):
            self.emit_groups(aload(s))
        if l < 2:
            p(f"v_and_b32 v{TMP}, 15, v{vLANE}\nv_lshlrev_b32 v{TMP}, 7, v{TMP}\nv_lshrrev_b32 v{TMP+1}, 4, v{vLANE}\nv_lshl_add_u32 v{TMP}, v{TMP+1}, 4, v{TMP}")
        else:
            for i in range(4 * NB):
                p(f"v_accvgpr_read_b32 v{CSUM+i}, {reg(PARK[t]+i)}")
        if l == 0:
            p(f"v_and_b32 v{vSIG}, 31, v{vLANE}\nv_lshlrev_b32 v{vSIG}, 2, v{vSIG}")
            p.waitfor([("W", 0)])
            p("s_barrier")
        self.emit_groups(bread(0))
        for s in range(32):
            need = rr(ring(s, 0), 4 * NA) + rr(bfr(s, 0), 4 * NB)
            if s % 8 == 7:
                need.append(("W", s // 8 + 1))
            p.waitfor(need)
            if s % 8 == 7:
                p("s_barrier")
            if s == 0:
                self.stamp(f"L{l}_k1first")
            mf = []
            for cb in range(6):
                for rb in range(4):
                    mf.append(mfma(acc(rb, cb), bfr(s, cb), ring(s, rb), acc(rb, cb) if s else None))
            if isA:
                mf.append(mfma(ACCH, bfr(s, 6), ring(s, 4), ACCH if s else None))
            n = len(mf)
            fills = []
            if s + 1 < 32:
                fills.append((0, n - 8, bread(s + 1)))
            vm = (aload(s + D - 1) if s + D - 1 < 32 else []) + extra[s]
            fills.append((1, n - 1, vm))
            interleave(p, mf, fills)
        self.stamp(f"L{l}_k1done")

    def allred2(self, a, b, t, op):
        p = self.p
        p(f"v_permlane32_swap_b32 v{a}, v{b}\n{op} v{a}, v{a}, v{b}\nv_mov_b32 v{t}, v{a}")
        p(f"v_permlane16_swap_b32 v{a}, v{t}\n{op} v{a}, v{a}, v{t}\nv_mov_b32 v{t}, v{a}\nv_permlane32_swap_b32 v{a}, v{t}")

    def ln_prep(self, l):
        p = self.p
        t = l & 1
        NA = 5 if t == 0 else 4
        NB = 7 if t == 0 else 6
        if l < 2:
            for sh in (8, 4, 2, 1):
                for i in range(4 * NB):
                    p(f"v_add_f32_dpp v{CSUM+i}, v{CSUM+i}, v{CSUM+i} row_ror:{sh} row_mask:0xf bank_mask:0xf")
            for i in range(4 * NB):
                p(f"v_accvgpr_write_b32 {reg(PARK[t]+i)}, v{CSUM+i}")
        for b in range(NA):
            L = LAND + 8 * b
            p(f"v_pk_add_f32 {vr(L,2)}, {vr(L,2)}, {vr(L+2,2)}\nv_pk_add_f32 {vr(L+4,2)}, {vr(L+4,2)}, {vr(L+6,2)}\nv_pk_add_f32 {vr(L,2)}, {vr(L,2)}, {vr(L+4,2)}")
            self.allred2(L, L + 1, L + 2, "v_add_f32")
            nm, rs = STAT + 2 * b, STAT + 2 * b + 1
            p(f"v_mul_f32 v{nm}, {fhex(-1/1024)}, v{L}\nv_mul_f32 v{L+2}, {fhex(1/1024)}, v{L+2}\nv_fma_f32 v{L+2}, -v{nm}, v{nm}, v{L+2}")
            p(f"v_max_f32 v{L+2}, 0, v{L+2}\nv_add_f32 v{L+2}, {fhex(1e-5)}, v{L+2}\nv_rsq_f32 v{rs}, v{L+2}")

    def fix(self, a, cs, b, n, scale):
        p = self.p
        st = vr(STAT + 2 * b, 2)
        for i in range(0, n, 2):
            p(f"v_pk_fma_f32 {vr(a+i,2)}, {vr(cs+i,2)}, {st}, {vr(a+i,2)} op_sel:[0,0,0] op_sel_hi:[1,0,1]")
            if scale:
                p(f"v_pk_mul_f32 {vr(a+i,2)}, {vr(a+i,2)}, {st} op_sel:[0,1] op_sel_hi:[1,1]")
        for i in range(0, n, 2):
            p(f"v_cvt_pk_bf16_f32 v{a+i//2}, v{a+i}, v{a+i+1}")

    def o_store(self, l, rb, r):
        self.p(f"buffer_store_dwordx4 {vr(r,4)}, v{vA1}, {SRD(sWS)}, s{sK} offen offset:{rb*1024} sc1", wr=["crit"])

    def epi_a(self, l):
        p = self.p
        Q = lambda rb: acc(rb, 0)
        K = lambda rb: acc(rb, 2)
        V = lambda rb: acc(rb, 4)
        wv, wk = TMP, TMP + 1
        p.begin()
        self.ln_prep(l)
        p(f"s_lshl_b32 s{sT0}, s{sWAVE}, 12\nv_add_u32 v{wv}, s{sT0}, v{vTW}\ns_lshl_b32 s{sT1}, s{sWAVE}, 10\nv_add_u32 v{wk}, s{sT1}, v{vLIN}")
        self.fix(ACCH, CSUM + 24, 4, 4, True)
        p(f"ds_write_b64 v{vHW}, {vr(ACCH,2)}", wr=["l_h"])
        for rb in (3, 2, 1, 0):
            self.fix(K(rb), CSUM + 8, rb, 8, True)
            self.fix(V(rb), CSUM + 16, rb, 8, True)
            for db in range(2):
                p(f"ds_write_b64 v{wv}, {vr(V(rb)+2*db,2)} offset:{LV + (1+rb)*1024 + db*512}", wr=[("l_v", rb, db)])
        p(f"ds_write_b128 v{wk}, {vr(K(3),4)} offset:{LK + 1024}", wr=["l_k"])
        p.end("epiA1")
        p("s_waitcnt lgkmcnt(0)\ns_barrier")
        p.begin()
        KP = A_ + 0
        VT = lambda db: A_ + 4 + 12 * db
        rv = TMP + 2
        p(f"v_add_u32 v{rv}, s{sT0}, v{vTR}")
        p(f"s_lshl_b32 s{sK}, s{sH}, 12\ns_add_u32 s{sK}, s{sK}, {hex(OF[l])}")
        p(f"ds_read_b128 {reg(KP,4)}, v{wk} offset:{LK}", rd=["x"])
        for b in range(5):
            for db in range(2):
                p(f"ds_read_b64_tr_b16 {reg(VT(db)+2*b,2)}, v{rv} offset:{LV + b*1024 + db*512}", rd=["x"])
        for rb in range(4):
            self.fix(Q(rb), CSUM, rb, 8, False)
        cq = lambda rb: STAT + 2 * rb
        SP = lambda rb: Q(rb) + 4
        SC = lambda rb: V(rb) + 4
        MX = lambda rb: TMP + 4 + rb
        for rb in range(4):
            p(mfma(SP(rb), K(rb - 1) if rb else KP, Q(rb), BIASP if rb else BIASP0))
            p(mfma(SC(rb), K(rb), Q(rb), BIASC))
            p(f"v_mul_f32 v{cq(rb)}, {fhex(LOG2E * 32 ** -0.5)}, v{cq(rb)+1}")
            for r in range(4):
                p(f"v_max_f32 v{SC(rb)+r}, v{SC(rb)+r}, v{SP(rb)+r}")
            p(f"v_max3_f32 v{MX(rb)}, v{SC(rb)}, v{SC(rb)+1}, v{SC(rb)+2}\nv_max_f32 v{MX(rb)}, v{MX(rb)}, v{SC(rb)+3}")
        for pr in range(2):
            self.allred2(MX(2 * pr), MX(2 * pr + 1), TMP + 8 + pr, "v_max_f32")
        for rb in range(4):
            mx = MX(rb) if rb % 2 == 0 else TMP + 8 + rb // 2
            s_, P = SC(rb), SP(rb)
            p(f"v_mul_f32_e64 v{cq(rb)+1}, -v{mx}, v{cq(rb)}")
            for i in (0, 2):
                p(f"v_pk_fma_f32 {vr(s_+i,2)}, {vr(s_+i,2)}, {vr(cq(rb),2)}, {vr(cq(rb),2)} op_sel:[0,0,1] op_sel_hi:[1,0,1]")
            for r in range(4):
                p(f"v_exp_f32 v{s_+r}, v{s_+r}")
            p(f"v_cvt_pk_bf16_f32 v{s_}, v{s_}, v{s_+1}\nv_cvt_pk_bf16_f32 v{s_+1}, v{s_+2}, v{s_+3}")
            mp = MASKP if rb else MASKP0
            p(f"v_and_b32 v{P}, v{s_}, v{mp}\nv_and_b32 v{P+1}, v{s_+1}, v{mp+1}\nv_and_b32 v{P+2}, v{s_}, v{MASKC}\nv_and_b32 v{P+3}, v{s_+1}, v{MASKC+1}")
            O = LAND + 8 * rb
            SM = K(rb) + 4
            p(mfma(SM, ONES, P, None))
            for db in range(2):
                p(mfma(O + 4 * db, VT(db) + 2 * rb, P, None))
            p(f"v_rcp_f32 v{SM}, v{SM}")
            for i in range(0, 8, 2):
                p(f"v_pk_mul_f32 {vr(O+i,2)}, {vr(O+i,2)}, {vr(SM,2)} op_sel:[0,0] op_sel_hi:[1,0]")
            for i in range(0, 8, 2):
                p(f"v_cvt_pk_bf16_f32 v{O+i//2}, v{O+i}, v{O+i+1}")
            self.o_store(l, rb, O)
        p.end("epiA2")

    def feat(self, X, b, P, E, t):
        p = self.p
        for fb in range(2):
            p(mfma(P + 4 * fb, WPHI + 4 * fb, X, None))
        mx, nm, t2, c = t, t + 1, t + 2, t + 4
        p(f"v_max3_f32 v{mx}, v{P}, v{P+1}, v{P+2}\nv_max3_f32 v{nm}, -v{P}, -v{P+1}, -v{P+2}")
        for i in (3, 5):
            p(f"v_max3_f32 v{mx}, v{mx}, v{P+i}, v{P+i+1}\nv_max3_f32 v{nm}, v{nm}, -v{P+i}, -v{P+i+1}")
        p(f"v_max_f32 v{mx}, v{mx}, v{P+7}\nv_max_f32_e64 v{nm}, v{nm}, -v{P+7}")
        self.allred2(mx, nm, t2, "v_max_f32")
        p(f"v_mul_f32 v{c}, {fhex(LOG2E)}, v{STAT+2*b+1}")
        p(f"v_mul_f32_e64 v{mx}, -v{mx}, v{c}\nv_mul_f32_e64 v{nm}, -v{t2}, v{c}")
        for i in range(0, 8, 2):
            p(f"v_pk_fma_f32 {vr(E+i,2)}, {vr(P+i,2)}, {vr(c,2)}, {vr(mx,2)} op_sel:[0,0,0] op_sel_hi:[1,0,0]")
            p(f"v_pk_fma_f32 {vr(P+i,2)}, {vr(P+i,2)}, {vr(c,2)}, {vr(mx,2)} op_sel:[0,0,1] op_sel_hi:[1,0,1] neg_lo:[1,0,0] neg_hi:[1,0,0]")
        for i in range(8):
            p(f"v_exp_f32 v{E+i}, v{E+i}\nv_exp_f32 v{P+i}, v{P+i}")

    def epi_b(self, l):
        p = self.p
        ki = l // 2
        Q = lambda rb: acc(rb, 0)
        K = lambda rb: acc(rb, 2)
        V = lambda rb: acc(rb, 4)
        wv, wp = TMP, TMP + 1
        p.begin()
        self.ln_prep(l)
        p(f"s_lshl_b32 s{sT0}, s{sWAVE}, 12\nv_add_u32 v{wv}, s{sT0}, v{vTW}\nv_add_u32 v{wp}, s{sT0}, v{wv}")
        for rb in range(4):
            self.fix(K(rb), CSUM + 8, rb, 8, False)
            self.fix(V(rb), CSUM + 16, rb, 8, True)
            for db in range(2):
                p(f"ds_write_b64 v{wv}, {vr(V(rb)+2*db,2)} offset:{LV + rb*1024 + db*512}", wr=[("l_v", rb, db)])
        for rb in range(4):
            u = rb % 2
            P, E, t = LAND + 16 * u, LAND + 16 * u + 8, TMP + 4 + 6 * u
            self.feat(K(rb), rb, P, E, t)
            PK, S = K(rb), V(rb)
            for sg, src in ((0, E), (1, P)):
                for i in range(4):
                    p(f"v_cvt_pk_bf16_f32 v{PK+4*sg+i}, v{src+2*i}, v{src+2*i+1}")
                p(mfma(S + 4 * sg, ONES, PK + 4 * sg, None))
                p(f"v_rcp_f32 v{S+4*sg}, v{S+4*sg}")
                for i in range(0, 8, 2):
                    p(f"v_pk_mul_f32 {vr(src+i,2)}, {vr(src+i,2)}, {vr(S+4*sg,2)} op_sel:[0,0] op_sel_hi:[1,0]")
                for i in range(4):
                    p(f"v_cvt_pk_bf16_f32 v{PK+4*sg+i}, v{src+2*i}, v{src+2*i+1}")
                for fb in range(2):
                    p(f"ds_write_b64 v{wp}, {vr(PK+4*sg+2*fb,2)} offset:{LPHI + rb*2048 + (2*sg+fb)*512}", wr=[("l_p", rb, sg, fb)])
        p.end("epiB_k")
        p("s_waitcnt lgkmcnt(0)\ns_barrier")
        self.stamp(f"L{l}_phik")
        p.begin()
        rp, so = TMP + 2, TMP + 3
        KV = LAND
        p(f"s_lshl_b32 s{sT0}, s{sWAVE}, 9\nv_add_u32 v{rp}, s{sT0}, v{vTR}")
        p(f"s_lshl_b32 s{sT1}, s{sH}, 2\ns_add_u32 s{sT1}, s{sT1}, s{sWAVE}\ns_lshl_b32 s{sT1}, s{sT1}, 3")
        p(f"s_add_u32 s{sT2}, s{sT1}, s{sRG}\ns_lshl_b32 s{sT3}, s{sT2}, 7\ns_add_u32 s{sT3}, s{sT3}, {hex(KVZ[ki])}")
        p(f"s_lshl_b32 s{sT2}, s{sT2}, 11\ns_add_u32 s{sT2}, s{sT2}, {hex(KVP[ki])}")
        self.dup_addr(so)
        for m in range(8):
            F = A_ + 12 * m
            for pp in range(2):
                p(f"ds_read_b64_tr_b16 {reg(F+2*pp,2)}, v{rp} offset:{LPHI + (2*m+pp)*2048}", rd=["x"])
                for db in range(2):
                    p(f"ds_read_b64_tr_b16 {reg(F+4+4*db+2*pp,2)}, v{vTR} offset:{LV + (2*m+pp)*1024 + db*512}", rd=["x"])
            for db in range(2):
                p(mfma(KV + 4 * db, F, F + 4 + 4 * db, KV + 4 * db if m else None))
            p(mfma(KV + 8, F, ONES, KV + 8 if m else None))
        for db in range(2):
            p(f"buffer_store_dwordx4 {vr(KV+4*db,4)}, v{vLIN}, {SRD(sWS)}, s{sT2} offen offset:{db*1024} sc1", wr=["crit"])
        p(f"buffer_store_dwordx4 {vr(KV+8,4)}, v{so}, {SRD(sWS)}, s{sT3} offen sc1", wr=["crit"])
        p(f"s_lshl_b32 s{sT0}, s{sH}, 8\nv_lshlrev_b32 v{vSIG}, 13, v{vLANE}\nv_add_u32 v{vSIG}, s{sT0}, v{vSIG}")
        for rb in range(4):
            self.fix(Q(rb), CSUM, rb, 8, False)
        EQ = lambda rb: K(rb)

        def qfeat(rb):
            u = rb % 2
            P, E, t = LAND + 16 + 0, LAND + 24, TMP + 4 + 6 * u
            if u:
                P, E = V(rb), V(rb - 1)
            self.feat(Q(rb), rb, P, E, t)
            for sg, src in ((0, E), (1, P)):
                for i in range(4):
                    p(f"v_cvt_pk_bf16_f32 v{EQ(rb)+4*sg+i}, v{src+2*i}, v{src+2*i+1}")
        qfeat(0)
        qfeat(1)
        p.end("epiB_kv")
        p.waitfor(["crit"])
        p("s_barrier")
        self.stamp(f"L{l}_kvack")
        self.signal(sWS, CNT + (7 + ki) * 65536, nl=8)
        p.begin()
        qfeat(2)
        qfeat(3)
        p.end("epiB_q")
        for q in range(8):
            self.emit_groups(self.wo_dma(1, q))
        p(f"s_lshl_b32 s{sT0}, s{sRG}, 5\ns_add_u32 s{sT0}, s{sT0}, s{sH}\ns_lshl_b32 s{sT0}, s{sT0}, 8\nv_mov_b32 v{vSIG}, s{sT0}")
        self.poll(sWS, CNT + (7 + ki) * 65536, 8)
        p("s_barrier")
        self.stamp(f"L{l}_kvseen")
        p.begin()
        p(f"s_lshl_b32 s{sT1}, s{sH}, 2\ns_add_u32 s{sT1}, s{sT1}, s{sWAVE}")
        p(f"s_lshl_b32 s{sT3}, s{sT1}, 10\ns_add_u32 s{sT3}, s{sT3}, {hex(KVZ[ki])}")
        p(f"s_lshl_b32 s{sT2}, s{sT1}, 14\ns_add_u32 s{sT2}, s{sT2}, {hex(KVP[ki])}")
        za = TMP + 2
        p(f"v_and_b32 v{za}, 7, v{vLANE}\nv_lshlrev_b32 v{za}, 7, v{za}\nv_lshrrev_b32 v{za+1}, 4, v{vLANE}\nv_lshl_add_u32 v{za}, v{za+1}, 4, v{za}")
        land = [LAND + 8 * i for i in range(4)] + [V(rb) for rb in range(4)]
        Z = LAND + 32
        p(f"buffer_load_dwordx4 {vr(Z,4)}, v{za}, {SRD(sWS)}, s{sT3} offen sc1")
        for g_ in range(8):
            if g_ and g_ % 2 == 0:
                p(f"s_add_u32 s{sT2}, s{sT2}, 4096")
            for db in range(2):
                p(f"buffer_load_dwordx4 {vr(land[g_]+4*db,4)}, v{vLIN}, {SRD(sWS)}, s{sT2} offen offset:{(g_%2)*2048 + db*1024} sc1")
        for sh in (4, 2, 1):
            for i in range(4):
                p(f"v_add_f32_dpp v{Z+i}, v{Z+i}, v{Z+i} row_ror:{sh} row_mask:0xf bank_mask:0xf")
        for g_ in range(1, 8):
            for i in range(0, 8, 2):
                p(f"v_pk_add_f32 {vr(land[0]+i,2)}, {vr(land[0]+i,2)}, {vr(land[g_]+i,2)}")
        for i in range(4):
            p(f"v_cvt_pk_bf16_f32 v{land[0]+i}, v{land[0]+2*i}, v{land[0]+2*i+1}")
        for i in range(2):
            p(f"v_cvt_pk_bf16_f32 v{Z+i}, v{Z+2*i}, v{Z+2*i+1}")
            p(f"v_cndmask_b32 v{Z+i}, 0, v{Z+i}, s[{sZ0}:{sZ0+1}]\nv_cndmask_b32 v{Z+i}, v{Z+i}, v{ONES}, s[{sZ1}:{sZ1+1}]")
        wa = TMP + 4
        p(f"s_lshr_b32 s{sT0}, s{sWAVE}, 1\ns_mul_i32 s{sT0}, s{sT0}, 3072\ns_and_b32 s{sT1}, s{sWAVE}, 1\ns_lshl_b32 s{sT1}, s{sT1}, 3\ns_add_u32 s{sT0}, s{sT0}, s{sT1}")
        p(f"v_add_u32 v{wa}, s{sT0}, v{vLIN}")
        for db in range(2):
            p(f"ds_write_b64 v{wa}, {vr(land[0]+2*db,2)} offset:{db*1024}", wr=[("k", db)])
        p(f"ds_write_b64 v{wa}, {vr(Z,2)} offset:2048", wr=[("k", 2)])
        p.end("epiB_red")
        p("s_waitcnt lgkmcnt(0)\ns_barrier")
        self.stamp(f"L{l}_kvred")
        p.begin()
        p(f"s_lshl_b32 s{sK}, s{sH}, 12\ns_add_u32 s{sK}, s{sK}, {hex(OF[l])}")
        F = A_
        for i in range(6):
            p(f"ds_read_b128 {reg(F+4*i,4)}, v{vLIN} offset:{i*1024}", rd=["x"])
        for rb in range(4):
            N = [Q(rb), V(rb)]
            DS = LAND + 8 * rb
            for sg in range(2):
                p(mfma(DS + 4 * sg, F + 12 * sg + 8, EQ(rb) + 4 * sg, None))
            for sg in range(2):
                for db in range(2):
                    p(mfma(N[sg] + 4 * db, F + 12 * sg + 4 * db, EQ(rb) + 4 * sg, None))
            p(f"v_rcp_f32 v{DS+2}, v{DS+1}\nv_rcp_f32 v{DS+3}, v{DS+5}")
            p(f"v_mul_f32 v{DS}, v{DS}, v{DS+2}\nv_fmac_f32 v{DS}, v{DS+4}, v{DS+3}\nv_add_f32 v{DS}, {fhex(1e-6)}, v{DS}\nv_rcp_f32 v{DS}, v{DS}")
            p(f"v_pk_mul_f32 {vr(DS+2,2)}, {vr(DS+2,2)}, {vr(DS,2)} op_sel:[0,0] op_sel_hi:[1,0]")
            for i in range(0, 8, 2):
                p(f"v_pk_mul_f32 {vr(N[0]+i,2)}, {vr(N[0]+i,2)}, {vr(DS+2,2)} op_sel:[0,0] op_sel_hi:[1,0]")
                p(f"v_pk_fma_f32 {vr(N[0]+i,2)}, {vr(N[1]+i,2)}, {vr(DS+2,2)}, {vr(N[0]+i,2)} op_sel:[0,1,0] op_sel_hi:[1,1,1]")
            for i in range(4):
                p(f"v_cvt_pk_bf16_f32 v{N[0]+i}, v{N[0]+2*i}, v{N[0]+2*i+1}")
            self.o_store(l, rb, N[0])
        p.end("epiB_o")

    def k2_main(self, l):
        p = self.p
        D = self.D2
        ring = lambda s, b: RING + (s % D) * 8 + 4 * b
        bfr = lambda s, j: BFR + (s % 2) * 16 + 4 * j
        acc2 = lambda b, j: ACC + 16 * b + 4 * j

        def aload(s):
            g = [[f"buffer_load_dwordx4 {reg(ring(s,b),4)}, v{vA2}, {SRD(sSRC)}, s{sK} offen offset:{b*1024} sc1"] for b in range(2)]
            g[-1] += [f"s_add_u32 s{sK}, s{sK}, 4096", f"s_and_b32 s{sK}, s{sK}, 0x1ffff"]
            return g

        def bread(s):
            return [[f"ds_read_b128 {reg(bfr(s,j),4)}, v{vHB if s >= 16 else vBB} offset:{(s%16)*4096 + j*1024}"] for j in range(4)]

        for s in range(D - 1):
            self.emit_groups(aload(s))
        self.emit_groups(bread(0))
        for s in range(32):
            p.waitfor(rr(ring(s, 0), 8) + rr(bfr(s, 0), 16))
            if s == 31:
                p("s_barrier")
            if s == 0:
                self.stamp(f"L{l}_k2first")
            mf = [mfma(acc2(b, j), bfr(s, j), ring(s, b), acc2(b, j)) for j in range(4) for b in range(2)]
            fills = []
            if s + 1 < 32:
                fills.append((0, 3, bread(s + 1)))
            if s + D - 1 < 32:
                fills.append((4, 7, aload(s + D - 1)))
            interleave(p, mf, fills)
        self.stamp(f"L{l}_k2done")

    def layer(self, l):
        p = self.p
        t = l & 1
        last = l == self.nlayers - 1
        self.k1_main(l)
        if l == 0:
            self.poll(sDBG, 128, 8, allwaves=True, pre=True)
        if t == 0:
            self.epi_a(l)
        else:
            self.epi_b(l)
        self.stamp(f"L{l}_epi")
        p(f"s_lshl_b32 s{sT0}, s{sRG}, 13\nv_lshl_add_u32 v{vSIG}, v{vLANE}, 8, s{sT0}")
        p.waitfor(["crit"])
        p("s_barrier")
        self.stamp(f"L{l}_oack")
        self.signal(sWS, CNT + l * 65536, nl=32)
        if t == 0:
            for q in range(8):
                self.emit_groups(self.wo_dma(0, q))
        self.src_srd(OF[l])
        p(f"s_lshl_b32 s{sK}, s{sROT2}, 12")
        p(f"v_add_u32 v{vBB}, {WO_L}, v{vLIN}\nv_add_u32 v{vHB}, {WO_L + 65536}, v{vLIN}")
        for i in range(16):
            p(f"v_lshlrev_b32 v{ACC+2*i}, 16, v{XRES+i}\nv_and_b32 v{ACC+2*i+1}, 0xffff0000, v{XRES+i}")
        p(f"s_lshl_b32 s{sT0}, s{sRB}, 4\ns_add_u32 s{sT0}, s{sT0}, s{sCB}\ns_lshl_b32 s{sT0}, s{sT0}, 8\nv_mov_b32 v{vSIG}, s{sT0}")
        self.poll(sWS, CNT + l * 65536, 32)
        p("s_waitcnt vmcnt(0)\ns_barrier")
        self.stamp(f"L{l}_S1")
        self.k2_main(l)
        for i in range(16):
            p(f"v_cvt_pk_bf16_f32 v{XRES+i}, v{ACC+2*i}, v{ACC+2*i+1}")
        if last:
            g, j = TMP + 1, TMP + 2
            p(f"v_lshrrev_b32 v{g}, 4, v{vLANE}\nv_and_b32 v{j}, 15, v{vLANE}")
            self.xrow_addr(TMP, g, j)
            p(f"s_mov_b32 s{sT0}, 0x10000")
            for b in range(2):
                for hf in range(2):
                    p(f"buffer_store_dwordx4 {vr(XRES+8*b+4*hf,4)}, v{TMP}, {SRD(sOUT)}, {'s%d'%sT0 if b else 0} offen offset:{64*hf}")
            return
        self.k2_store(l + 1)
        nt = 1 - t
        p(f"s_lshr_b32 s{sT0}, s{sRB}, 1\ns_lshl_b32 s{sT0}, s{sT0}, 13\nv_lshl_add_u32 v{vSIG}, v{vLANE}, 8, s{sT0}")
        if nt == 0:
            p(f"s_and_b32 s{sT1}, s{sRB}, 1\ns_sub_u32 s{sT1}, 0, s{sT1}\ns_and_b32 s{sT2}, s{sRB}, 7\ns_cmp_eq_u32 s{sT2}, 7\ns_cselect_b32 s{sT2}, 0, s{sT1}")
            p(f"s_and_b32 s{sT1}, s{sRG}, 3\ns_cmp_eq_u32 s{sT1}, 0\ns_cselect_b32 s{sEXP}, 32, 48")
        else:
            p(f"s_mov_b32 s{sT2}, 0\ns_mov_b32 s{sEXP}, 32")
        p.waitfor(["crit"])
        p("s_barrier")
        self.stamp(f"L{l}_xack")
        self.signal(sWS, CNT + (4 + l) * 65536, nl_sgpr=sT2)
        for c in range(2):
            self.emit_groups(self.w_dma(nt, c))
        self.src_srd(XF[l + 1])
        p(f"s_lshl_b32 s{sT0}, s{sRG}, 5\ns_add_u32 s{sT0}, s{sT0}, s{sH}\ns_lshl_b32 s{sT0}, s{sT0}, 8\nv_mov_b32 v{vSIG}, s{sT0}")
        self.poll(sWS, CNT + (4 + l) * 65536, f"s{sEXP}")
        p("s_waitcnt vmcnt(0)\ns_barrier")
        self.stamp(f"L{l}_S2")

    def build(self):
        p = self.p
        self.phase0()
        for l in range(self.nlayers):
            self.layer(l)
        if self.stamps:
            p("s_waitcnt vmcnt(0)")
            self.stamp("end")
            p(f"s_lshl_b32 s{sT0}, s2, 2\ns_add_u32 s{sT0}, s{sT0}, s{sWAVE}\ns_lshl_b32 s{sT0}, s{sT0}, 8\ns_add_u32 s{sT0}, s{sT0}, {hex(TS)}")
            p(f"v_lshlrev_b32 v{vT0}, 2, v{vLANE}\nbuffer_store_dword v{vTS}, v{vT0}, {SRD(sWS)}, s{sT0} offen")
            p(f"s_add_u32 s{sT0}, s{sT0}, 0x40000\nbuffer_store_dword v255, v{vT0}, {SRD(sWS)}, s{sT0} offen")
        p("L_end:\ns_endpgm")
        text, nnop = p.finalize()
        text += "L_code_end:\n"
        text = text.replace("CODE_BYTES", f"(L_code_end - {KNAME} - 64)")
        self.nnop = nnop
        return wrap([(KNAME, text, 512, 256, 102)], [(KNAME, 256, 256, 163840)])


if __name__ == "__main__":
    import argparse, json
    ap = argparse.ArgumentParser()
    ap.add_argument("-o", default="k.s")
    ap.add_argument("--stamps", action="store_true")
    ap.add_argument("--kw", default="{}")
    a = ap.parse_args()
    g = Gen(stamps=a.stamps, **json.loads(a.kw))
    s = g.build()
    if a.stamps:
        s = s.replace(".amdgcn_target", "; STAMPS " + ",".join(g.stnames) + "\n.amdgcn_target", 1)
    open(a.o, "w").write(s)
    print("nops", g.nnop, "bytes", len(s))
    for e in g.p.est:
        print(e)
```

```python
import sys, math
from asmlib import KNAME, wrap, vr, ar, sr, reg
from ir import Prog, Inst, waitfor_inst

MB = 1 << 20
CNT = 0
TS = 1 * MB
ST = [2 * MB + l * 256 * 1024 for l in range(4)]
CS = [3 * MB + t * 512 * 1024 for t in range(2)]
KVP = [4 * MB + i * 2 * MB for i in range(2)]
KVZ = [8 * MB + i * 128 * 1024 for i in range(2)]
WOP = [10 * MB + t * 2 * MB for t in range(2)]
WP = [14 * MB + t * 6 * MB for t in range(2)]
XF = [26 * MB + 8 * l * MB for l in range(4)]
OF = [30 * MB + 8 * l * MB for l in range(4)]
OOB = 0x80000000

sWS, sX, sOUT, sDBG, sIN, sCODE, sSRC = 4, 8, 12, 16, 20, 24, 40
sWAVE, sRG, sH, sRB, sCB, sROT1, sROT2 = 28, 29, 30, 31, 32, 33, 34
sK, sT0, sT1, sT2, sT3, sD, sPC = 35, 36, 37, 38, 39, 44, 45
sM1, sM2 = 46, 48
sWB, sWOB = 50, 51
sTSP = 52
sEXP = 54
sZ0, sZ1 = 56, 58
sP = 64
SRD = lambda s: f"s[{s}:{s+3}]"

vLANE, vLIN, vA1, vH1, vA2, vBB, vHB, vTW, vTR, vHW, vSIG, vT0, vONE, vTS, vST, vSTH = range(16)
ONES = 16
BIASP, BIASC, MASKP, MASKC = 20, 24, 28, 30
XRES = 32
CSUM = 48
BIASP0, MASKP0 = 76, 80
STAT = 82
LAND = 92
ACC = 132
ACCH = 228
TMP = 232
acc = lambda rb, cb: ACC + rb * 24 + cb * 4
A_ = 256
RING = A_ + 0
BFR = A_ + 80
PARK = [A_ + 136, A_ + 164]
WPHI = A_ + 192
REG = 49152
WO_L = 32768
LV, LK, LPHI = 0, 20480, 16384

LOG2E = 1.4426950408889634


def fhex(x):
    import struct
    return hex(struct.unpack("<I", struct.pack("<f", x))[0])


def mfma(d, a, b, c):
    cs = "0" if c is None else reg(c, 4)
    return f"v_mfma_f32_16x16x32_bf16 {reg(d,4)}, {reg(a,4)}, {reg(b,4)}, {cs}"


def rr(base, n):
    return list(range(base, base + n))


def interleave(p, mf, fills):
    n = len(mf)
    slots = [[] for _ in range(n)]
    for lo, hi, groups in fills:
        m = len(groups)
        for i, g in enumerate(groups):
            pos = lo + (i * (hi - lo + 1)) // max(m, 1)
            slots[min(pos, n - 1)].append(g)
    for i in range(n):
        p(mf[i])
        for g in slots[i]:
            for x in g:
                p.add(x if isinstance(x, Inst) else Inst(x))


class Gen:
    def __init__(self, stamps=False, rot1=16, rot2=4, D=4, D2=6, nlayers=4, probe=None):
        self.p = Prog()
        self.stamps = stamps
        self.nst = 0
        self.stnames = []
        self.rot1, self.rot2, self.D, self.D2 = rot1, rot2, D, D2
        self.nlayers = nlayers
        self.probe = probe

    def stamp(self, name):
        if self.probe and name == self.probe:
            self.p("s_memrealtime s[62:63]\ns_waitcnt lgkmcnt(0)")
        if not self.stamps:
            return
        p = self.p
        p(f"s_memrealtime s[{sTSP}:{sTSP+1}]\ns_memtime s[60:61]\ns_waitcnt lgkmcnt(0)\nv_writelane_b32 v{vTS}, s{sTSP}, {self.nst}\nv_writelane_b32 v255, s60, {self.nst}")
        self.stnames.append(name)
        self.nst += 1

    def srd(self, s, lo, size):
        self.p(f"s_mov_b32 s{s}, s{lo}\ns_mov_b32 s{s+1}, s{lo+1}\ns_mov_b32 s{s+2}, {hex(size)}\ns_mov_b32 s{s+3}, 0x20000")

    def src_srd(self, off):
        self.p(f"s_add_u32 s{sSRC}, s{sWS}, {hex(off)}\ns_addc_u32 s{sSRC+1}, s{sWS+1}, 0")

    def signal(self, srd, base, nl_sgpr=None, nl=32):
        p = self.p
        L = p.label("Lsig")
        p(f"s_cmp_lg_u32 s{sWAVE}, 0\ns_cbranch_scc1 {L}")
        if nl_sgpr is not None:
            p(f"s_mov_b32 exec_hi, s{nl_sgpr}")
        else:
            p(f"s_mov_b32 exec_lo, {hex((1 << nl) - 1)}\ns_mov_b32 exec_hi, 0")
        p(f"s_mov_b32 s{sT0}, {hex(base)}")
        p(f"buffer_atomic_add v{vONE}, v{vSIG}, {SRD(srd)}, s{sT0} offen sc1")
        p("s_mov_b64 exec, -1")
        p(f"{L}:")

    def poll(self, srd, base, exp, allwaves=False, pre=False):
        p = self.p
        L, E = p.label("Lpoll"), p.label("Lpe")
        if not allwaves:
            p(f"s_cmp_lg_u32 s{sWAVE}, 0\ns_cbranch_scc1 {E}")
        p(f"s_mov_b32 s{sT0}, {hex(base)}\ns_mov_b32 s{sT1}, 0")
        if pre:
            p(f"v_cmp_gt_u32 vcc, {exp}, v{vT0}\ns_cbranch_vccz {E}")
        p(f"{L}:")
        p(f"buffer_load_dword v{vT0}, v{vSIG}, {SRD(srd)}, s{sT0} offen sc1")
        p(f"s_add_u32 s{sT1}, s{sT1}, 1")
        p(f"v_cmp_gt_u32 vcc, {exp}, v{vT0}")
        p(f"s_cbranch_vccz {E}")
        p(f"s_cmp_lt_u32 s{sT1}, 0x100000\ns_cbranch_scc1 {L}")
        p(f"{E}:")

    def w_dma(self, t, c):
        g = []
        for q in range(3):
            pre = []
            if q == 0:
                pre += [f"s_lshl_b32 s{sD}, s{sWAVE}, 1", f"s_add_u32 s{sD}, s{sD}, s{sROT1}", f"s_add_u32 s{sD}, s{sD}, {8*c}",
                        f"s_and_b32 s{sD}, s{sD}, 31", f"s_mul_i32 s{sD}, s{sD}, 6144", f"s_add_u32 s{sD}, s{sD}, s{sWB}",
                        f"s_add_u32 s{sD}, s{sD}, {hex(WP[t])}",
                        f"s_mul_i32 s{sPC}, s{sWAVE}, 12288", f"s_add_u32 m0, s{sPC}, {(c%3)*REG}"]
            else:
                pre += [f"s_add_u32 s{sD}, s{sD}, 4096", "s_add_u32 m0, m0, 4096"]
            for u in range(4):
                x = Inst(f"buffer_load_dwordx4 v{vLIN}, {SRD(sWS)}, s{sD} offen offset:{u*1024} sc1 lds", xwr=[("W", c)])
                g.append((pre if u == 0 else []) + [x])
        return g

    def wo_dma(self, t, q):
        pre = [f"s_add_u32 s{sPC}, s{sWAVE}, {4*q}", f"s_add_u32 s{sD}, s{sPC}, s{sROT2}", f"s_and_b32 s{sD}, s{sD}, 31",
               f"s_lshl_b32 s{sD}, s{sD}, 12", f"s_add_u32 s{sD}, s{sD}, s{sWOB}", f"s_add_u32 s{sD}, s{sD}, {hex(WOP[t])}",
               f"s_lshl_b32 s{sPC}, s{sPC}, 12", f"s_add_u32 m0, s{sPC}, {WO_L}"]
        g = []
        for u in range(4):
            x = Inst(f"buffer_load_dwordx4 v{vLIN}, {SRD(sWS)}, s{sD} offen offset:{u*1024} sc1 lds", xwr=[("WO", q)])
            g.append((pre if u == 0 else []) + [x])
        return g

    def emit_groups(self, groups):
        for g in groups:
            for x in g:
                self.p.add(x if isinstance(x, Inst) else Inst(x))

    def setup(self):
        p = self.p
        p("s_cmp_ge_u32 s2, 256\ns_cbranch_scc1 L_end")
        p(f"s_load_dwordx16 s[{sP}:{sP+15}], s[0:1], 0\ns_load_dwordx4 s[{sP+16}:{sP+19}], s[0:1], 64")
        if self.probe:
            p("s_memrealtime s[84:85]\ns_memrealtime s[62:63]")
        p(f"s_getpc_b64 s[{sCODE}:{sCODE+1}]")
        p(f"v_lshrrev_b32 v1, 6, v0\nv_and_b32 v{vLANE}, 63, v0\nv_readfirstlane_b32 s{sWAVE}, v1")
        if self.stamps:
            p(f"v_mov_b32 v{vTS}, 0\nv_mov_b32 v255, 0")
        p(f"s_and_b32 s{sT0}, s2, 7\ns_lshr_b32 s{sT1}, s2, 3")
        p(f"s_and_b32 s{sT2}, s{sT1}, 3\ns_lshr_b32 s{sT3}, s{sT1}, 2")
        p(f"s_and_b32 s{sRG}, s{sT0}, 1\ns_lshl_b32 s{sCB}, s{sRG}, 3\ns_lshl_b32 s{sRG}, s{sRG}, 2\ns_add_u32 s{sRG}, s{sRG}, s{sT2}")
        p(f"s_add_u32 s{sCB}, s{sCB}, s{sT3}")
        p(f"s_lshr_b32 s{sT0}, s{sT0}, 1\ns_lshl_b32 s{sH}, s{sT0}, 3\ns_add_u32 s{sH}, s{sH}, s{sT3}")
        p(f"s_lshl_b32 s{sRB}, s{sT0}, 2\ns_add_u32 s{sRB}, s{sRB}, s{sT2}")
        p(f"s_mul_i32 s{sROT1}, s{sT3}, {self.rot1}\ns_and_b32 s{sROT1}, s{sROT1}, 31")
        p(f"s_mul_i32 s{sROT2}, s{sT3}, {self.rot2}\ns_and_b32 s{sROT2}, s{sROT2}, 31")
        p(f"v_lshlrev_b32 v{vLIN}, 4, v{vLANE}")
        g, j = TMP + 1, TMP + 2
        p(f"v_lshrrev_b32 v{g}, 4, v{vLANE}\nv_and_b32 v{j}, 15, v{vLANE}")
        self.xrow_addr(TMP, g, j)
        p(f"v_lshrrev_b32 v{TMP+3}, 3, v{vLANE}\nv_and_b32 v{TMP+4}, 7, v{vLANE}\nv_lshlrev_b32 v{TMP+4}, 4, v{TMP+4}")
        p(f"v_lshl_add_u32 v{TMP+5}, v{TMP+3}, 11, v{TMP+4}")
        p(f"v_mul_u32_u24 v{TMP+3}, 6144, v{TMP+3}\nv_add_u32 v{TMP+3}, v{TMP+3}, v{TMP+4}")
        p("s_waitcnt lgkmcnt(0)")
        self.stamp("start")
        self.srd(sX, sP + 0, 4 * MB)
        p(f"s_mov_b32 s{sT0}, 0x10000")
        for b in range(2):
            for hf in range(2):
                p(f"buffer_load_dwordx4 {vr(XRES+8*b+4*hf,4)}, v{TMP}, {SRD(sX)}, {'s%d'%sT0 if b else 0} offen offset:{64*hf}")
        self.srd(sIN, sP + 2, 6 * MB)
        self.raw_wqkv(0)
        self.srd(sWS, sP + 18, 256 * MB)
        self.srd(sDBG, sP + 16, 256)
        self.srd(sOUT, sP + 14, 4 * MB)
        p(f"s_mov_b32 s{sSRC+2}, {hex(4*MB)}\ns_mov_b32 s{sSRC+3}, 0x20000")
        self.src_srd(XF[0])
        p(f"s_mov_b32 s{sCODE+2}, CODE_BYTES\ns_mov_b32 s{sCODE+3}, 0x20000")
        p(f"s_lshr_b32 s{sT0}, s2, 3\ns_lshl_b32 s{sT0}, s{sT0}, 2\ns_add_u32 s{sT0}, s{sT0}, s{sWAVE}\ns_lshl_b32 s{sT0}, s{sT0}, 10")
        p(f"buffer_load_dword v{TMP+6}, v{vLIN}, {SRD(sCODE)}, s{sT0} offen")
        z = TMP + 8
        for i in range(4):
            p(f"v_mov_b32 v{z+i}, 0")
        p(f"v_lshrrev_b32 v{vT0}, 3, v{vLANE}\nv_lshlrev_b32 v{vT0}, 16, v{vT0}\nv_add_u32 v{vT0}, v{vT0}, v{TMP+4}")
        p(f"s_mul_i32 s{sT0}, s{sWAVE}, {3*65536}\ns_lshl_b32 s{sT1}, s2, 8\ns_add_u32 s{sT0}, s{sT0}, s{sT1}")
        p("s_mov_b32 exec_lo, 0xffffff\ns_mov_b32 exec_hi, 0")
        p(f"buffer_store_dwordx4 {vr(z,4)}, v{vT0}, {SRD(sWS)}, s{sT0} offen sc1")
        p("s_mov_b64 exec, -1")
        self.consts(g, j)

    def xrow_addr(self, d, g, j):
        p = self.p
        p(f"s_and_b32 s{sT0}, s{sRB}, 7\ns_lshl_b32 s{sT0}, s{sT0}, 7\ns_lshl_b32 s{sT1}, s{sWAVE}, 5\ns_add_u32 s{sT0}, s{sT0}, s{sT1}")
        p(f"s_lshl_b32 s{sT0}, s{sT0}, 1\ns_lshr_b32 s{sT1}, s{sRB}, 3\ns_add_u32 s{sT0}, s{sT0}, s{sT1}\ns_lshl_b32 s{sT0}, s{sT0}, 11")
        p(f"s_lshl_b32 s{sT1}, s{sCB}, 7\ns_add_u32 s{sT0}, s{sT0}, s{sT1}")
        p(f"v_lshl_add_u32 v{d}, v{j}, 12, s{sT0}\nv_lshl_add_u32 v{d}, v{g}, 4, v{d}")

    def raw_wqkv(self, stage):
        p = self.p
        p(f"s_lshr_b32 s{sT0}, s2, 4\ns_lshl_b32 s{sT0}, s{sT0}, 2\ns_add_u32 s{sT0}, s{sT0}, s{sWAVE}\ns_mul_i32 s{sT0}, s{sT0}, {16*6144}")
        p(f"s_and_b32 s{sT1}, s2, 15\ns_lshl_b32 s{sT1}, s{sT1}, 7\ns_add_u32 s{sT0}, s{sT0}, s{sT1}")
        p(f"s_lshl_b32 s{sT1}, s{sWAVE}, 11")
        for part in range(3):
            for rgp in range(2):
                p(f"s_add_u32 s{sT2}, s{sT0}, {part*2048 + rgp*8*6144}\ns_add_u32 m0, s{sT1}, {stage + part*8192 + rgp*1024}")
                p(f"buffer_load_dwordx4 v{TMP+3}, {SRD(sIN)}, s{sT2} offen lds", wr=[("raw", stage)])

    def raw_wo(self, stage):
        p = self.p
        p(f"s_lshr_b32 s{sT0}, s2, 4\ns_lshl_b32 s{sT0}, s{sT0}, 2\ns_add_u32 s{sT0}, s{sT0}, s{sWAVE}\ns_lshl_b32 s{sT0}, s{sT0}, 15")
        p(f"s_and_b32 s{sT1}, s2, 15\ns_lshl_b32 s{sT1}, s{sT1}, 7\ns_add_u32 s{sT0}, s{sT0}, s{sT1}")
        p(f"s_lshl_b32 s{sT1}, s{sWAVE}, 11")
        for rgp in range(2):
            p(f"s_add_u32 s{sT2}, s{sT0}, {rgp*8*2048}\ns_add_u32 m0, s{sT1}, {stage + rgp*1024}")
            p(f"buffer_load_dwordx4 v{TMP+5}, {SRD(sIN)}, s{sT2} offen lds", wr=[("raw", stage)])

    def consts(self, g, j):
        p = self.p
        t, u = TMP + 12, TMP + 13
        for i in range(4):
            p(f"v_mov_b32 v{ONES+i}, 0x3f803f80")
        p(f"v_mov_b32 v{vONE}, 1")
        p(f"s_mov_b32 s{sM1}, 0xaaaaaaaa\ns_mov_b32 s{sM1+1}, 0xaaaaaaaa\ns_mov_b32 s{sM2}, 0xcccccccc\ns_mov_b32 s{sM2+1}, 0xcccccccc")
        p(f"s_mov_b32 s{sZ0}, 0x11111111\ns_mov_b32 s{sZ0+1}, 0x11111111\ns_mov_b32 s{sZ1}, 0x22222222\ns_mov_b32 s{sZ1+1}, 0x22222222")
        p(f"s_mul_i32 s{sWB}, s{sH}, {192*1024}\ns_lshl_b32 s{sWOB}, s{sCB}, 17")
        p(f"s_lshl_b32 s{sT0}, s{sRG}, 2\ns_add_u32 s{sT0}, s{sT0}, s{sWAVE}\ns_lshl_b32 s{sT1}, s{sT0}, 17\nv_add_u32 v{vA1}, s{sT1}, v{vLIN}")
        p(f"v_lshlrev_b32 v{t}, 9, v{g}\nv_lshl_add_u32 v{t}, v{j}, 3, v{t}")
        p(f"s_lshl_b32 s{sT1}, s{sT0}, 13\nv_add_u32 v{vST}, s{sT1}, v{t}")
        p(f"s_and_b32 s{sT2}, s{sRG}, 3\ns_cmp_eq_u32 s{sT2}, 0\ns_cselect_b32 s{sT2}, 0, {hex(128*1024-3072)}\ns_cselect_b32 s{sT3}, 0, 2048")
        p(f"s_lshl_b32 s{sT1}, s{sRG}, 19\ns_sub_u32 s{sT1}, s{sT1}, s{sT2}\nv_add_u32 v{vH1}, s{sT1}, v{vLIN}")
        p(f"v_mov_b32 v{u}, {hex(OOB)}\nv_cmp_gt_u32 vcc, 8, v{j}\nv_cndmask_b32 v{vH1}, v{vH1}, v{u}, vcc")
        p(f"s_lshl_b32 s{sT1}, s{sRG}, 15\ns_sub_u32 s{sT1}, s{sT1}, s{sT3}\nv_add_u32 v{vSTH}, s{sT1}, v{t}")
        p(f"s_lshl_b32 s{sT0}, s{sRB}, 1\ns_lshr_b32 s{sT1}, s{sWAVE}, 1\ns_add_u32 s{sT0}, s{sT0}, s{sT1}\ns_lshl_b32 s{sT0}, s{sT0}, 17")
        p(f"s_and_b32 s{sT1}, s{sWAVE}, 1\ns_lshl_b32 s{sT1}, s{sT1}, 11\ns_add_u32 s{sT0}, s{sT0}, s{sT1}\nv_add_u32 v{vA2}, s{sT0}, v{vLIN}")

        def slot(d, s_, g_):
            p(f"v_and_b32 v{t}, 1, v{g_}\nv_lshl_add_u32 v{t}, v{t}, 3, v{s_}\nv_and_b32 v{t}, 15, v{t}")
            p(f"v_lshrrev_b32 v{u}, 1, v{g_}\nv_lshl_add_u32 v{t}, v{u}, 4, v{t}")
            p(f"v_lshrrev_b32 v{u}, 3, v{s_}\nv_lshl_add_u32 v{t}, v{u}, 5, v{t}\nv_lshlrev_b32 v{d}, 3, v{t}")
        slot(vTW, j, g)
        p(f"v_lshrrev_b32 v{TMP+14}, 2, v{vLANE}\nv_and_b32 v{TMP+15}, 3, v{vLANE}")
        slot(vTR, TMP + 14, TMP + 15)
        p(f"s_and_b32 s{sT0}, s{sWAVE}, 1\ns_lshl_b32 s{sT1}, s{sT0}, 3\ns_add_u32 s{sT1}, s{sT1}, {LK}\ns_lshl_b32 s{sT0}, s{sT0}, 9")
        p(f"v_add_u32 v{t}, s{sT1}, v{vLIN}\nv_add_u32 v{u}, s{sT0}, v{vTW}")
        p(f"s_cmp_lt_u32 s{sWAVE}, 2\ns_cselect_b64 vcc, -1, 0\nv_cndmask_b32 v{vHW}, v{u}, v{t}, vcc")

    def attn_consts(self):
        p = self.p
        g, j, d, t, big = TMP + 1, TMP + 2, TMP + 3, TMP + 4, TMP + 5
        p(f"v_lshrrev_b32 v{g}, 4, v{vLANE}\nv_and_b32 v{j}, 15, v{vLANE}\nv_lshlrev_b32 v{g}, 2, v{g}\nv_sub_u32 v{g}, v{g}, v{j}")
        p(f"v_mov_b32 v{big}, {fhex(-1e30)}")
        for r in range(4):
            half = "0xffff0000" if r & 1 else "0xffff"
            for (bias, mask, isC) in ((BIASC, MASKC, True), (BIASP, MASKP, False)):
                if isC:
                    p(f"v_add_u32 v{d}, {r+7}, v{g}\nv_cmp_gt_u32 vcc, 8, v{d}")
                else:
                    p(f"v_add_u32 v{d}, {r}, v{g}\nv_cmp_le_i32 vcc, 9, v{d}")
                p(f"v_cndmask_b32 v{bias+r}, v{big}, 0, vcc")
                p(f"v_mov_b32 v{t}, {half}\nv_cndmask_b32 v{t}, 0, v{t}, vcc")
                if r & 1:
                    p(f"v_or_b32 v{mask+r//2}, v{mask+r//2}, v{t}")
                else:
                    p(f"v_mov_b32 v{mask+r//2}, v{t}")
        p(f"s_and_b32 s{sT0}, s{sRG}, 3\ns_or_b32 s{sT0}, s{sT0}, s{sWAVE}\ns_cmp_eq_u32 s{sT0}, 0\ns_cselect_b64 vcc, -1, 0")
        for r in range(4):
            p(f"v_cndmask_b32 v{BIASP0+r}, v{BIASP+r}, v{big}, vcc")
        for r in range(2):
            p(f"v_cndmask_b32 v{MASKP0+r}, v{MASKP+r}, 0, vcc")

    def repack_wqkv(self, t, stage):
        p = self.p
        a, a2, so = TMP + 16, TMP + 17, TMP + 18
        F = A_ + 0
        p(f"v_lshrrev_b32 v{a}, 4, v{vLANE}\nv_lshlrev_b32 v{a}, 10, v{a}\nv_bfe_u32 v{a2}, v{vLANE}, 2, 2\nv_lshl_add_u32 v{a}, v{a2}, 7, v{a}")
        p(f"v_and_b32 v{a2}, 3, v{vLANE}\nv_lshl_add_u32 v{a}, v{a2}, 3, v{a}")
        p(f"s_lshr_b32 s{sT0}, s{sWAVE}, 1\ns_lshl_b32 s{sT0}, s{sT0}, 6\ns_and_b32 s{sT1}, s{sWAVE}, 1")
        p(f"s_mul_i32 s{sT2}, s{sT1}, 8224\ns_add_u32 s{sT2}, s{sT2}, s{sT0}\ns_mul_i32 s{sT3}, s{sT1}, 16352\ns_add_u32 s{sT3}, s{sT3}, s{sT0}")
        p(f"v_add_u32 v{a2}, s{sT3}, v{a}\nv_add_u32 v{a}, s{sT2}, v{a}")
        p(f"s_and_b32 s{sT2}, s2, 15\ns_lshl_b32 s{sT2}, s{sT2}, 1\ns_lshr_b32 s{sT0}, s{sWAVE}, 1\ns_add_u32 s{sT2}, s{sT2}, s{sT0}")
        p(f"s_lshr_b32 s{sT0}, s2, 4")
        p(f"s_mul_i32 s{sT3}, s{sT2}, {192*1024}\ns_mul_i32 s{sD}, s{sT0}, 12288\ns_add_u32 s{sT3}, s{sT3}, s{sD}")
        p(f"s_mul_i32 s{sD}, s{sT1}, 3072\ns_add_u32 s{sT3}, s{sT3}, s{sD}\ns_add_u32 s{sT3}, s{sT3}, {hex(WP[t])}\ns_add_u32 s{sD}, s{sT3}, 6144")
        p(f"s_mul_i32 s{sT2}, s{sT2}, 6\ns_mul_i32 s{sT1}, s{sT1}, 3\ns_add_u32 s{sT2}, s{sT2}, s{sT1}\ns_lshl_b32 s{sT2}, s{sT2}, 11")
        p(f"s_lshl_b32 s{sT0}, s{sT0}, 7\ns_add_u32 s{sT2}, s{sT2}, s{sT0}\ns_add_u32 s{sT2}, s{sT2}, {hex(CS[t])}\ns_add_u32 s{sT1}, s{sT2}, 4096")
        self.dup_addr(so)
        offs = [(a, 0), (a2, 32), (a, 8192)]
        for i in range(3):
            for tt in range(2):
                for pp in range(2):
                    p(f"ds_read_b64_tr_b16 {reg(F+(i*2+tt)*4+2*pp,2)}, v{offs[i][0]} offset:{stage + offs[i][1] + (32*tt+4*pp)*128}")
        for i in range(3):
            for tt in range(2):
                p(f"buffer_store_dwordx4 {reg(F+(i*2+tt)*4,4)}, v{vLIN}, {SRD(sWS)}, s{sD if tt else sT3} offen offset:{i*1024} sc1", wr=["crit"])
        for tt in range(2):
            for i in range(3):
                p(mfma(LAND + 4 * i, F + (i * 2 + tt) * 4, ONES, LAND + 4 * i if tt else None))
        for i in range(3):
            p(f"buffer_store_dwordx4 {vr(LAND+4*i,4)}, v{so}, {SRD(sWS)}, s{sT1 if i == 2 else sT2} offen offset:{(i&1)*2048} sc1", wr=["crit"])

    def dup_addr(self, d):
        p = self.p
        p(f"v_lshrrev_b32 v{d}, 4, v{vLANE}\nv_lshlrev_b32 v{d}, 4, v{d}\nv_and_b32 v{vT0}, 15, v{vLANE}\nv_lshl_add_u32 v{d}, v{vT0}, 6, v{d}")
        p(f"v_cmp_gt_u32 vcc, 2, v{vT0}\nv_mov_b32 v{vT0}, {hex(OOB)}\nv_cndmask_b32 v{d}, v{vT0}, v{d}, vcc")

    def repack_wo(self, t, stage):
        p = self.p
        a, a2 = TMP + 16, TMP + 17
        F = A_ + 32 + 8 * t
        p(f"v_lshrrev_b32 v{a}, 2, v{vLANE}\nv_lshlrev_b32 v{a}, 7, v{a}\nv_and_b32 v{a2}, 3, v{vLANE}\nv_lshl_add_u32 v{a}, v{a2}, 4, v{a}")
        p(f"s_lshr_b32 s{sT0}, s{sWAVE}, 1\ns_lshl_b32 s{sT0}, s{sT0}, 12\ns_and_b32 s{sT1}, s{sWAVE}, 1\ns_lshl_b32 s{sT1}, s{sT1}, 6\ns_add_u32 s{sT0}, s{sT0}, s{sT1}")
        p(f"v_add_u32 v{a}, s{sT0}, v{a}")
        p(f"s_and_b32 s{sT0}, s2, 15\ns_lshl_b32 s{sT0}, s{sT0}, 17\ns_lshr_b32 s{sT1}, s2, 4\ns_lshl_b32 s{sT1}, s{sT1}, 13\ns_add_u32 s{sT0}, s{sT0}, s{sT1}")
        p(f"s_lshl_b32 s{sT1}, s{sWAVE}, 11\ns_add_u32 s{sT0}, s{sT0}, s{sT1}\ns_add_u32 s{sT0}, s{sT0}, {hex(WOP[t])}")
        for i in range(2):
            for pp in range(2):
                p(f"ds_read_b64_tr_b16 {reg(F+4*i+2*pp,2)}, v{a} offset:{stage + 8*i + pp*2048}")
        for i in range(2):
            p(f"buffer_store_dwordx4 {reg(F+4*i,4)}, v{vLIN}, {SRD(sWS)}, s{sT0} offen offset:{i*1024} sc1")

    def phase0(self):
        p = self.p
        self.setup()
        self.k2_store(0, sched=False)
        p.waitfor([("raw", 0), TMP + 6])
        p("s_barrier")
        self.stamp("p0_raw")
        self.repack_wqkv(0, 0)
        S_B, S_AO, S_BO, S_PHI = 24576, 49152, 57344, 65536
        self.srd(sIN, sP + 8, 6 * MB)
        self.raw_wqkv(S_B)
        self.srd(sIN, sP + 4, 2 * MB)
        self.raw_wo(S_AO)
        self.srd(sIN, sP + 12, 2 * MB)
        self.raw_wo(S_BO)
        self.srd(sIN, sP + 10, 65536)
        p(f"s_and_b32 s{sT0}, s{sWAVE}, 1\ns_lshl_b32 s{sT0}, s{sT0}, 10\ns_add_u32 m0, s{sT0}, {S_PHI}\ns_lshl_b32 s{sT1}, s{sH}, 11\ns_add_u32 s{sT0}, s{sT0}, s{sT1}")
        p(f"buffer_load_dwordx4 v{vLIN}, {SRD(sIN)}, s{sT0} offen lds")
        p(f"s_and_b32 s{sT0}, s2, 31\ns_lshl_b32 s{sT0}, s{sT0}, 2\nv_mov_b32 v{vSIG}, s{sT0}")
        p.waitfor(["crit"])
        p("s_barrier")
        self.stamp("p0_ack")
        self.signal(sDBG, 0, nl=1)
        self.attn_consts()
        p("s_waitcnt vmcnt(0)\ns_barrier")
        self.stamp("p0_raw2")
        self.repack_wqkv(1, S_B)
        self.repack_wo(0, S_AO)
        self.repack_wo(1, S_BO)
        a, a2 = TMP + 16, TMP + 17
        p(f"v_lshrrev_b32 v{a}, 2, v{vLANE}\nv_lshlrev_b32 v{a}, 6, v{a}\nv_and_b32 v{a2}, 3, v{vLANE}\nv_lshl_add_u32 v{a}, v{a2}, 3, v{a}\nv_add_u32 v{a}, {S_PHI}, v{a}")
        for fb in range(2):
            for pp in range(2):
                p(f"ds_read_b64_tr_b16 {reg(WPHI+4*fb+2*pp,2)}, v{a} offset:{fb*32 + pp*1024}")
        p("s_waitcnt lgkmcnt(0)")
        p(f"v_mov_b32 v{TMP}, v{vSIG}\nv_and_b32 v{vSIG}, 31, v{vLANE}\nv_lshlrev_b32 v{vSIG}, 2, v{vSIG}")
        self.poll(sDBG, 0, 8)
        p("s_waitcnt vmcnt(0)\ns_barrier")
        self.stamp("G1")
        p(f"v_mov_b32 v{vSIG}, v{TMP}")
        self.signal(sDBG, 128, nl=1)

    def k2_store(self, l, sched=True):
        p = self.p
        so = TMP + 20
        p(f"s_lshl_b32 s{sT0}, s{sCB}, 13\ns_add_u32 s{sT0}, s{sT0}, {hex(XF[l])}\ns_add_u32 s{sT1}, s{sT0}, 4096")
        p(f"s_lshl_b32 s{sT2}, s{sRB}, 2\ns_add_u32 s{sT2}, s{sT2}, s{sWAVE}\ns_lshl_b32 s{sT2}, s{sT2}, 12\ns_lshl_b32 s{sT3}, s{sCB}, 7")
        p(f"s_add_u32 s{sT2}, s{sT2}, s{sT3}\ns_add_u32 s{sT2}, s{sT2}, {hex(ST[l])}")
        p(f"v_and_b32 v{so}, 15, v{vLANE}\nv_lshrrev_b32 v{so+1}, 2, v{so}\nv_lshrrev_b32 v{so+2}, 4, v{vLANE}\nv_cmp_eq_u32 vcc, v{so+1}, v{so+2}")
        p(f"v_lshlrev_b32 v{so}, 3, v{so}\nv_mov_b32 v{so+1}, {hex(OOB)}\nv_cndmask_b32 v{so}, v{so+1}, v{so}, vcc")
        for b in range(2):
            for hf in range(2):
                p(f"buffer_store_dwordx4 {vr(XRES+8*b+4*hf,4)}, v{vA2}, {SRD(sWS)}, s{sT1 if hf else sT0} offen offset:{b*1024} sc1", wr=["crit"])
        for hf in range(2):
            for b in range(2):
                X = XRES + 8 * b + 4 * hf
                S, G = LAND + 8 * b, LAND + 8 * b + 4
                p(mfma(G, X, X, G if hf else None))
                p(mfma(S, ONES, X, S if hf else None))
        for b in range(2):
            S, G = LAND + 8 * b, LAND + 8 * b + 4
            p(f"v_cndmask_b32 v{G}, v{G}, v{G+1}, s[{sM1}:{sM1+1}]\nv_cndmask_b32 v{G+2}, v{G+2}, v{G+3}, s[{sM1}:{sM1+1}]")
            p(f"v_cndmask_b32 v{S+1}, v{G}, v{G+2}, s[{sM2}:{sM2+1}]")
            p(f"buffer_store_dwordx2 {vr(S,2)}, v{so}, {SRD(sWS)}, s{sT2} offen offset:{b*2048} sc1", wr=["crit"])

    def k1_main(self, l):
        p = self.p
        t = l & 1
        isA = t == 0
        D = self.D
        NA = 5 if isA else 4
        NB = 7 if isA else 6
        ring = lambda s, j: RING + (s % D) * 20 + 4 * j
        bfr = lambda s, cb: BFR + (s % 2) * 28 + 4 * cb

        def aload(s):
            g = [[f"buffer_load_dwordx4 {reg(ring(s,j),4)}, v{vA1}, {SRD(sSRC)}, s{sK} offen offset:{j*1024} sc1"] for j in range(4)]
            if isA:
                g.append([f"buffer_load_dwordx4 {reg(ring(s,4),4)}, v{vH1}, {SRD(sSRC)}, s{sK} offen sc1"])
            g[-1] += [f"s_add_u32 s{sK}, s{sK}, 4096", f"s_and_b32 s{sK}, s{sK}, 0x1ffff"]
            return g

        def bread(s):
            o = (s % 8) * 6144
            g = [[f"ds_read_b128 {reg(bfr(s,cb),4)}, v{vBB} offset:{o + cb*1024}"] for cb in range(6)]
            if isA:
                g.append([f"ds_read_b128 {reg(bfr(s,6),4)}, v{vHB} offset:{o}"])
            if s % 8 == 0:
                base = ((s // 8) % 3) * REG
                g[0] = [f"v_add_u32 v{vBB}, {base}, v{vLIN}"] + g[0]
                if isA:
                    g[1] = [f"v_add_u32 v{vHB}, s{sT3}, v{vBB}"] + g[1]
            return g

        extra = {s: [] for s in range(32)}
        dma_sched = {}
        if l == 0:
            dma_sched = {1: (0, 3), 2: (5, 11), 3: (13, 19)}
        else:
            dma_sched = {2: (0, 6), 3: (7, 14)}
        for c, (lo, hi) in dma_sched.items():
            gs = self.w_dma(t, c)
            for i, g in enumerate(gs):
                extra[lo + (i * (hi - lo + 1)) // len(gs)].append(g)
        stl = []
        for b in range(NA):
            for jj in range(4):
                va, off = (vST, b * 2048) if b < 4 else (vSTH, 0)
                so = sT1 if off >= 4096 else sT0
                stl.append([f"buffer_load_dwordx2 {vr(LAND+8*b+2*jj,2)}, v{va}, {SRD(sWS)}, s{so} offen offset:{(off & 4095) + jj*128} sc1"])
        stl[0] = [f"s_mov_b32 s{sT0}, {hex(ST[l])}", f"s_mov_b32 s{sT1}, {hex(ST[l]+4096)}"] + stl[0]
        if l < 2:
            csl = []
            for cb in range(NB):
                pre = [f"s_add_u32 s{sT2}, s{sT2}, 2048"] if cb else \
                      [f"s_mul_i32 s{sT2}, s{sH}, 12288", f"s_add_u32 s{sT2}, s{sT2}, {hex(CS[t])}"]
                if cb == 6:
                    pre = [f"s_lshl_b32 s{sPC}, s{sWAVE}, 11", f"s_add_u32 s{sT2}, s{sT2}, s{sPC}", f"s_sub_u32 s{sT2}, s{sT2}, {3*2048}"]
                csl.append(pre + [f"buffer_load_dwordx4 {vr(CSUM+4*cb,4)}, v{TMP}, {SRD(sWS)}, s{sT2} offen sc1"])
            stl += csl
        if l == 0:
            stl.append([f"s_mov_b32 s{sT2}, 128", f"buffer_load_dword v{vT0}, v{vSIG}, {SRD(sDBG)}, s{sT2} offen sc1"])
        for i, g in enumerate(stl):
            extra[20 + (i * 9) // len(stl)].append(g)

        p(f"s_lshl_b32 s{sK}, s{sROT1}, 12\ns_add_u32 s{sT3}, s{sWAVE}, 2\ns_lshl_b32 s{sT3}, s{sT3}, 10")
        if l == 0:
            self.emit_groups(self.w_dma(t, 0))
        for s in range(D - 1):
            self.emit_groups(aload(s))
        if l < 2:
            p(f"v_and_b32 v{TMP}, 15, v{vLANE}\nv_lshlrev_b32 v{TMP}, 7, v{TMP}\nv_lshrrev_b32 v{TMP+1}, 4, v{vLANE}\nv_lshl_add_u32 v{TMP}, v{TMP+1}, 4, v{TMP}")
        else:
            for i in range(4 * NB):
                p(f"v_accvgpr_read_b32 v{CSUM+i}, {reg(PARK[t]+i)}")
        if l == 0:
            p(f"v_and_b32 v{vSIG}, 31, v{vLANE}\nv_lshlrev_b32 v{vSIG}, 2, v{vSIG}")
            p.waitfor([("W", 0)])
            p("s_barrier")
        self.emit_groups(bread(0))
        for s in range(32):
            need = rr(ring(s, 0), 4 * NA) + rr(bfr(s, 0), 4 * NB)
            if s % 8 == 7:
                need.append(("W", s // 8 + 1))
            p.waitfor(need)
            if s % 8 == 7:
                p("s_barrier")
            if s == 0:
                self.stamp(f"L{l}_k1first")
            mf = []
            for cb in range(6):
                for rb in range(4):
                    mf.append(mfma(acc(rb, cb), bfr(s, cb), ring(s, rb), acc(rb, cb) if s else None))
            if isA:
                mf.append(mfma(ACCH, bfr(s, 6), ring(s, 4), ACCH if s else None))
            n = len(mf)
            fills = []
            if s + 1 < 32:
                fills.append((0, n - 8, bread(s + 1)))
            vm = (aload(s + D - 1) if s + D - 1 < 32 else []) + extra[s]
            fills.append((1, n - 1, vm))
            interleave(p, mf, fills)
        self.stamp(f"L{l}_k1done")

    def allred2(self, a, b, t, op):
        p = self.p
        p(f"v_permlane32_swap_b32 v{a}, v{b}\n{op} v{a}, v{a}, v{b}\nv_mov_b32 v{t}, v{a}")
        p(f"v_permlane16_swap_b32 v{a}, v{t}\n{op} v{a}, v{a}, v{t}\nv_mov_b32 v{t}, v{a}\nv_permlane32_swap_b32 v{a}, v{t}")

    def ln_prep(self, l):
        p = self.p
        t = l & 1
        NA = 5 if t == 0 else 4
        NB = 7 if t == 0 else 6
        if l < 2:
            for sh in (8, 4, 2, 1):
                for i in range(4 * NB):
                    p(f"v_add_f32_dpp v{CSUM+i}, v{CSUM+i}, v{CSUM+i} row_ror:{sh} row_mask:0xf bank_mask:0xf")
            for i in range(4 * NB):
                p(f"v_accvgpr_write_b32 {reg(PARK[t]+i)}, v{CSUM+i}")
        for b in range(NA):
            L = LAND + 8 * b
            p(f"v_pk_add_f32 {vr(L,2)}, {vr(L,2)}, {vr(L+2,2)}\nv_pk_add_f32 {vr(L+4,2)}, {vr(L+4,2)}, {vr(L+6,2)}\nv_pk_add_f32 {vr(L,2)}, {vr(L,2)}, {vr(L+4,2)}")
            self.allred2(L, L + 1, L + 2, "v_add_f32")
            nm, rs = STAT + 2 * b, STAT + 2 * b + 1
            p(f"v_mul_f32 v{nm}, {fhex(-1/1024)}, v{L}\nv_mul_f32 v{L+2}, {fhex(1/1024)}, v{L+2}\nv_fma_f32 v{L+2}, -v{nm}, v{nm}, v{L+2}")
            p(f"v_max_f32 v{L+2}, 0, v{L+2}\nv_add_f32 v{L+2}, {fhex(1e-5)}, v{L+2}\nv_rsq_f32 v{rs}, v{L+2}")

    def fix(self, a, cs, b, n, scale):
        p = self.p
        st = vr(STAT + 2 * b, 2)
        for i in range(0, n, 2):
            p(f"v_pk_fma_f32 {vr(a+i,2)}, {vr(cs+i,2)}, {st}, {vr(a+i,2)} op_sel:[0,0,0] op_sel_hi:[1,0,1]")
            if scale:
                p(f"v_pk_mul_f32 {vr(a+i,2)}, {vr(a+i,2)}, {st} op_sel:[0,1] op_sel_hi:[1,1]")
        for i in range(0, n, 2):
            p(f"v_cvt_pk_bf16_f32 v{a+i//2}, v{a+i}, v{a+i+1}")

    def o_store(self, l, rb, r):
        self.p(f"buffer_store_dwordx4 {vr(r,4)}, v{vA1}, {SRD(sWS)}, s{sK} offen offset:{rb*1024} sc1", wr=["crit"])

    def epi_a(self, l):
        p = self.p
        Q = lambda rb: acc(rb, 0)
        K = lambda rb: acc(rb, 2)
        V = lambda rb: acc(rb, 4)
        wv, wk = TMP, TMP + 1
        p.begin()
        self.ln_prep(l)
        p(f"s_lshl_b32 s{sT0}, s{sWAVE}, 12\nv_add_u32 v{wv}, s{sT0}, v{vTW}\ns_lshl_b32 s{sT1}, s{sWAVE}, 10\nv_add_u32 v{wk}, s{sT1}, v{vLIN}")
        self.fix(ACCH, CSUM + 24, 4, 4, True)
        p(f"ds_write_b64 v{vHW}, {vr(ACCH,2)}", wr=["l_h"])
        for rb in (3, 2, 1, 0):
            self.fix(K(rb), CSUM + 8, rb, 8, True)
            self.fix(V(rb), CSUM + 16, rb, 8, True)
            for db in range(2):
                p(f"ds_write_b64 v{wv}, {vr(V(rb)+2*db,2)} offset:{LV + (1+rb)*1024 + db*512}", wr=[("l_v", rb, db)])
        p(f"ds_write_b128 v{wk}, {vr(K(3),4)} offset:{LK + 1024}", wr=["l_k"])
        p.end("epiA1")
        p("s_waitcnt lgkmcnt(0)\ns_barrier")
        p.begin()
        KP = A_ + 0
        VT = lambda db: A_ + 4 + 12 * db
        rv = TMP + 2
        p(f"v_add_u32 v{rv}, s{sT0}, v{vTR}")
        p(f"s_lshl_b32 s{sK}, s{sH}, 12\ns_add_u32 s{sK}, s{sK}, {hex(OF[l])}")
        p(f"ds_read_b128 {reg(KP,4)}, v{wk} offset:{LK}", rd=["x"])
        for b in range(5):
            for db in range(2):
                p(f"ds_read_b64_tr_b16 {reg(VT(db)+2*b,2)}, v{rv} offset:{LV + b*1024 + db*512}", rd=["x"])
        for rb in range(4):
            self.fix(Q(rb), CSUM, rb, 8, False)
        cq = lambda rb: STAT + 2 * rb
        SP = lambda rb: Q(rb) + 4
        SC = lambda rb: V(rb) + 4
        MX = lambda rb: TMP + 4 + rb
        for rb in range(4):
            p(mfma(SP(rb), K(rb - 1) if rb else KP, Q(rb), BIASP if rb else BIASP0))
            p(mfma(SC(rb), K(rb), Q(rb), BIASC))
            p(f"v_mul_f32 v{cq(rb)}, {fhex(LOG2E * 32 ** -0.5)}, v{cq(rb)+1}")
            for r in range(4):
                p(f"v_max_f32 v{SC(rb)+r}, v{SC(rb)+r}, v{SP(rb)+r}")
            p(f"v_max3_f32 v{MX(rb)}, v{SC(rb)}, v{SC(rb)+1}, v{SC(rb)+2}\nv_max_f32 v{MX(rb)}, v{MX(rb)}, v{SC(rb)+3}")
        for pr in range(2):
            self.allred2(MX(2 * pr), MX(2 * pr + 1), TMP + 8 + pr, "v_max_f32")
        for rb in range(4):
            mx = MX(rb) if rb % 2 == 0 else TMP + 8 + rb // 2
            s_, P = SC(rb), SP(rb)
            p(f"v_mul_f32_e64 v{cq(rb)+1}, -v{mx}, v{cq(rb)}")
            for i in (0, 2):
                p(f"v_pk_fma_f32 {vr(s_+i,2)}, {vr(s_+i,2)}, {vr(cq(rb),2)}, {vr(cq(rb),2)} op_sel:[0,0,1] op_sel_hi:[1,0,1]")
            for r in range(4):
                p(f"v_exp_f32 v{s_+r}, v{s_+r}")
            p(f"v_cvt_pk_bf16_f32 v{s_}, v{s_}, v{s_+1}\nv_cvt_pk_bf16_f32 v{s_+1}, v{s_+2}, v{s_+3}")
            mp = MASKP if rb else MASKP0
            p(f"v_and_b32 v{P}, v{s_}, v{mp}\nv_and_b32 v{P+1}, v{s_+1}, v{mp+1}\nv_and_b32 v{P+2}, v{s_}, v{MASKC}\nv_and_b32 v{P+3}, v{s_+1}, v{MASKC+1}")
            O = LAND + 8 * rb
            SM = K(rb) + 4
            p(mfma(SM, ONES, P, None))
            for db in range(2):
                p(mfma(O + 4 * db, VT(db) + 2 * rb, P, None))
            p(f"v_rcp_f32 v{SM}, v{SM}")
            for i in range(0, 8, 2):
                p(f"v_pk_mul_f32 {vr(O+i,2)}, {vr(O+i,2)}, {vr(SM,2)} op_sel:[0,0] op_sel_hi:[1,0]")
            for i in range(0, 8, 2):
                p(f"v_cvt_pk_bf16_f32 v{O+i//2}, v{O+i}, v{O+i+1}")
            self.o_store(l, rb, O)
        p.end("epiA2")

    def feat(self, X, b, P, E, t):
        p = self.p
        for fb in range(2):
            p(mfma(P + 4 * fb, WPHI + 4 * fb, X, None))
        mx, nm, t2, c = t, t + 1, t + 2, t + 4
        p(f"v_max3_f32 v{mx}, v{P}, v{P+1}, v{P+2}\nv_max3_f32 v{nm}, -v{P}, -v{P+1}, -v{P+2}")
        for i in (3, 5):
            p(f"v_max3_f32 v{mx}, v{mx}, v{P+i}, v{P+i+1}\nv_max3_f32 v{nm}, v{nm}, -v{P+i}, -v{P+i+1}")
        p(f"v_max_f32 v{mx}, v{mx}, v{P+7}\nv_max_f32_e64 v{nm}, v{nm}, -v{P+7}")
        self.allred2(mx, nm, t2, "v_max_f32")
        p(f"v_mul_f32 v{c}, {fhex(LOG2E)}, v{STAT+2*b+1}")
        p(f"v_mul_f32_e64 v{mx}, -v{mx}, v{c}\nv_mul_f32_e64 v{nm}, -v{t2}, v{c}")
        for i in range(0, 8, 2):
            p(f"v_pk_fma_f32 {vr(E+i,2)}, {vr(P+i,2)}, {vr(c,2)}, {vr(mx,2)} op_sel:[0,0,0] op_sel_hi:[1,0,0]")
            p(f"v_pk_fma_f32 {vr(P+i,2)}, {vr(P+i,2)}, {vr(c,2)}, {vr(mx,2)} op_sel:[0,0,1] op_sel_hi:[1,0,1] neg_lo:[1,0,0] neg_hi:[1,0,0]")
        for i in range(8):
            p(f"v_exp_f32 v{E+i}, v{E+i}\nv_exp_f32 v{P+i}, v{P+i}")

    def epi_b(self, l):
        p = self.p
        ki = l // 2
        Q = lambda rb: acc(rb, 0)
        K = lambda rb: acc(rb, 2)
        V = lambda rb: acc(rb, 4)
        wv, wp = TMP, TMP + 1
        p.begin()
        self.ln_prep(l)
        p(f"s_lshl_b32 s{sT0}, s{sWAVE}, 12\nv_add_u32 v{wv}, s{sT0}, v{vTW}\nv_add_u32 v{wp}, s{sT0}, v{wv}")
        for rb in range(4):
            self.fix(K(rb), CSUM + 8, rb, 8, False)
            self.fix(V(rb), CSUM + 16, rb, 8, True)
            for db in range(2):
                p(f"ds_write_b64 v{wv}, {vr(V(rb)+2*db,2)} offset:{LV + rb*1024 + db*512}", wr=[("l_v", rb, db)])
        for rb in range(4):
            u = rb % 2
            P, E, t = LAND + 16 * u, LAND + 16 * u + 8, TMP + 4 + 6 * u
            self.feat(K(rb), rb, P, E, t)
            PK, S = K(rb), V(rb)
            for sg, src in ((0, E), (1, P)):
                for i in range(4):
                    p(f"v_cvt_pk_bf16_f32 v{PK+4*sg+i}, v{src+2*i}, v{src+2*i+1}")
                p(mfma(S + 4 * sg, ONES, PK + 4 * sg, None))
                p(f"v_rcp_f32 v{S+4*sg}, v{S+4*sg}")
                for i in range(0, 8, 2):
                    p(f"v_pk_mul_f32 {vr(src+i,2)}, {vr(src+i,2)}, {vr(S+4*sg,2)} op_sel:[0,0] op_sel_hi:[1,0]")
                for i in range(4):
                    p(f"v_cvt_pk_bf16_f32 v{PK+4*sg+i}, v{src+2*i}, v{src+2*i+1}")
                for fb in range(2):
                    p(f"ds_write_b64 v{wp}, {vr(PK+4*sg+2*fb,2)} offset:{LPHI + rb*2048 + (2*sg+fb)*512}", wr=[("l_p", rb, sg, fb)])
        p.end("epiB_k")
        p("s_waitcnt lgkmcnt(0)\ns_barrier")
        self.stamp(f"L{l}_phik")
        p.begin()
        rp, so = TMP + 2, TMP + 3
        KV = LAND
        p(f"s_lshl_b32 s{sT0}, s{sWAVE}, 9\nv_add_u32 v{rp}, s{sT0}, v{vTR}")
        p(f"s_lshl_b32 s{sT1}, s{sH}, 2\ns_add_u32 s{sT1}, s{sT1}, s{sWAVE}\ns_lshl_b32 s{sT1}, s{sT1}, 3")
        p(f"s_add_u32 s{sT2}, s{sT1}, s{sRG}\ns_lshl_b32 s{sT3}, s{sT2}, 7\ns_add_u32 s{sT3}, s{sT3}, {hex(KVZ[ki])}")
        p(f"s_lshl_b32 s{sT2}, s{sT2}, 11\ns_add_u32 s{sT2}, s{sT2}, {hex(KVP[ki])}")
        self.dup_addr(so)
        for m in range(8):
            F = A_ + 12 * m
            for pp in range(2):
                p(f"ds_read_b64_tr_b16 {reg(F+2*pp,2)}, v{rp} offset:{LPHI + (2*m+pp)*2048}", rd=["x"])
                for db in range(2):
                    p(f"ds_read_b64_tr_b16 {reg(F+4+4*db+2*pp,2)}, v{vTR} offset:{LV + (2*m+pp)*1024 + db*512}", rd=["x"])
            for db in range(2):
                p(mfma(KV + 4 * db, F, F + 4 + 4 * db, KV + 4 * db if m else None))
            p(mfma(KV + 8, F, ONES, KV + 8 if m else None))
        for db in range(2):
            p(f"buffer_store_dwordx4 {vr(KV+4*db,4)}, v{vLIN}, {SRD(sWS)}, s{sT2} offen offset:{db*1024} sc1", wr=["crit"])
        p(f"buffer_store_dwordx4 {vr(KV+8,4)}, v{so}, {SRD(sWS)}, s{sT3} offen sc1", wr=["crit"])
        p(f"s_lshl_b32 s{sT0}, s{sH}, 8\nv_lshlrev_b32 v{vSIG}, 13, v{vLANE}\nv_add_u32 v{vSIG}, s{sT0}, v{vSIG}")
        for rb in range(4):
            self.fix(Q(rb), CSUM, rb, 8, False)
        EQ = lambda rb: K(rb)

        def qfeat(rb):
            u = rb % 2
            P, E, t = LAND + 16 + 0, LAND + 24, TMP + 4 + 6 * u
            if u:
                P, E = V(rb), V(rb - 1)
            self.feat(Q(rb), rb, P, E, t)
            for sg, src in ((0, E), (1, P)):
                for i in range(4):
                    p(f"v_cvt_pk_bf16_f32 v{EQ(rb)+4*sg+i}, v{src+2*i}, v{src+2*i+1}")
        qfeat(0)
        qfeat(1)
        p.end("epiB_kv")
        p.waitfor(["crit"])
        p("s_barrier")
        self.stamp(f"L{l}_kvack")
        self.signal(sWS, CNT + (7 + ki) * 65536, nl=8)
        p.begin()
        qfeat(2)
        qfeat(3)
        p.end("epiB_q")
        for q in range(8):
            self.emit_groups(self.wo_dma(1, q))
        p(f"s_lshl_b32 s{sT0}, s{sRG}, 5\ns_add_u32 s{sT0}, s{sT0}, s{sH}\ns_lshl_b32 s{sT0}, s{sT0}, 8\nv_mov_b32 v{vSIG}, s{sT0}")
        self.poll(sWS, CNT + (7 + ki) * 65536, 8)
        p("s_barrier")
        self.stamp(f"L{l}_kvseen")
        p.begin()
        p(f"s_lshl_b32 s{sT1}, s{sH}, 2\ns_add_u32 s{sT1}, s{sT1}, s{sWAVE}")
        p(f"s_lshl_b32 s{sT3}, s{sT1}, 10\ns_add_u32 s{sT3}, s{sT3}, {hex(KVZ[ki])}")
        p(f"s_lshl_b32 s{sT2}, s{sT1}, 14\ns_add_u32 s{sT2}, s{sT2}, {hex(KVP[ki])}")
        za = TMP + 2
        p(f"v_and_b32 v{za}, 7, v{vLANE}\nv_lshlrev_b32 v{za}, 7, v{za}\nv_lshrrev_b32 v{za+1}, 4, v{vLANE}\nv_lshl_add_u32 v{za}, v{za+1}, 4, v{za}")
        land = [LAND + 8 * i for i in range(4)] + [V(rb) for rb in range(4)]
        Z = LAND + 32
        p(f"buffer_load_dwordx4 {vr(Z,4)}, v{za}, {SRD(sWS)}, s{sT3} offen sc1")
        for g_ in range(8):
            if g_ and g_ % 2 == 0:
                p(f"s_add_u32 s{sT2}, s{sT2}, 4096")
            for db in range(2):
                p(f"buffer_load_dwordx4 {vr(land[g_]+4*db,4)}, v{vLIN}, {SRD(sWS)}, s{sT2} offen offset:{(g_%2)*2048 + db*1024} sc1")
        for sh in (4, 2, 1):
            for i in range(4):
                p(f"v_add_f32_dpp v{Z+i}, v{Z+i}, v{Z+i} row_ror:{sh} row_mask:0xf bank_mask:0xf")
        for g_ in range(1, 8):
            for i in range(0, 8, 2):
                p(f"v_pk_add_f32 {vr(land[0]+i,2)}, {vr(land[0]+i,2)}, {vr(land[g_]+i,2)}")
        for i in range(4):
            p(f"v_cvt_pk_bf16_f32 v{land[0]+i}, v{land[0]+2*i}, v{land[0]+2*i+1}")
        for i in range(2):
            p(f"v_cvt_pk_bf16_f32 v{Z+i}, v{Z+2*i}, v{Z+2*i+1}")
            p(f"v_cndmask_b32 v{Z+i}, 0, v{Z+i}, s[{sZ0}:{sZ0+1}]\nv_cndmask_b32 v{Z+i}, v{Z+i}, v{ONES}, s[{sZ1}:{sZ1+1}]")
        wa = TMP + 4
        p(f"s_lshr_b32 s{sT0}, s{sWAVE}, 1\ns_mul_i32 s{sT0}, s{sT0}, 3072\ns_and_b32 s{sT1}, s{sWAVE}, 1\ns_lshl_b32 s{sT1}, s{sT1}, 3\ns_add_u32 s{sT0}, s{sT0}, s{sT1}")
        p(f"v_add_u32 v{wa}, s{sT0}, v{vLIN}")
        for db in range(2):
            p(f"ds_write_b64 v{wa}, {vr(land[0]+2*db,2)} offset:{db*1024}", wr=[("k", db)])
        p(f"ds_write_b64 v{wa}, {vr(Z,2)} offset:2048", wr=[("k", 2)])
        p.end("epiB_red")
        p("s_waitcnt lgkmcnt(0)\ns_barrier")
        self.stamp(f"L{l}_kvred")
        p.begin()
        p(f"s_lshl_b32 s{sK}, s{sH}, 12\ns_add_u32 s{sK}, s{sK}, {hex(OF[l])}")
        F = A_
        for i in range(6):
            p(f"ds_read_b128 {reg(F+4*i,4)}, v{vLIN} offset:{i*1024}", rd=["x"])
        for rb in range(4):
            N = [Q(rb), V(rb)]
            DS = LAND + 8 * rb
            for sg in range(2):
                p(mfma(DS + 4 * sg, F + 12 * sg + 8, EQ(rb) + 4 * sg, None))
            for sg in range(2):
                for db in range(2):
                    p(mfma(N[sg] + 4 * db, F + 12 * sg + 4 * db, EQ(rb) + 4 * sg, None))
            p(f"v_rcp_f32 v{DS+2}, v{DS+1}\nv_rcp_f32 v{DS+3}, v{DS+5}")
            p(f"v_mul_f32 v{DS}, v{DS}, v{DS+2}\nv_fmac_f32 v{DS}, v{DS+4}, v{DS+3}\nv_add_f32 v{DS}, {fhex(1e-6)}, v{DS}\nv_rcp_f32 v{DS}, v{DS}")
            p(f"v_pk_mul_f32 {vr(DS+2,2)}, {vr(DS+2,2)}, {vr(DS,2)} op_sel:[0,0] op_sel_hi:[1,0]")
            for i in range(0, 8, 2):
                p(f"v_pk_mul_f32 {vr(N[0]+i,2)}, {vr(N[0]+i,2)}, {vr(DS+2,2)} op_sel:[0,0] op_sel_hi:[1,0]")
                p(f"v_pk_fma_f32 {vr(N[0]+i,2)}, {vr(N[1]+i,2)}, {vr(DS+2,2)}, {vr(N[0]+i,2)} op_sel:[0,1,0] op_sel_hi:[1,1,1]")
            for i in range(4):
                p(f"v_cvt_pk_bf16_f32 v{N[0]+i}, v{N[0]+2*i}, v{N[0]+2*i+1}")
            self.o_store(l, rb, N[0])
        p.end("epiB_o")

    def k2_main(self, l):
        p = self.p
        D = self.D2
        ring = lambda s, b: RING + (s % D) * 8 + 4 * b
        bfr = lambda s, j: BFR + (s % 2) * 16 + 4 * j
        acc2 = lambda b, j: ACC + 16 * b + 4 * j

        def aload(s):
            g = [[f"buffer_load_dwordx4 {reg(ring(s,b),4)}, v{vA2}, {SRD(sSRC)}, s{sK} offen offset:{b*1024} sc1"] for b in range(2)]
            g[-1] += [f"s_add_u32 s{sK}, s{sK}, 4096", f"s_and_b32 s{sK}, s{sK}, 0x1ffff"]
            return g

        def bread(s):
            return [[f"ds_read_b128 {reg(bfr(s,j),4)}, v{vHB if s >= 16 else vBB} offset:{(s%16)*4096 + j*1024}"] for j in range(4)]

        for s in range(D - 1):
            self.emit_groups(aload(s))
        self.emit_groups(bread(0))
        for s in range(32):
            p.waitfor(rr(ring(s, 0), 8) + rr(bfr(s, 0), 16))
            if s == 31:
                p("s_barrier")
            if s == 0:
                self.stamp(f"L{l}_k2first")
            mf = [mfma(acc2(b, j), bfr(s, j), ring(s, b), acc2(b, j)) for j in range(4) for b in range(2)]
            fills = []
            if s + 1 < 32:
                fills.append((0, 3, bread(s + 1)))
            if s + D - 1 < 32:
                fills.append((4, 7, aload(s + D - 1)))
            interleave(p, mf, fills)
        self.stamp(f"L{l}_k2done")

    def layer(self, l):
        p = self.p
        t = l & 1
        last = l == self.nlayers - 1
        self.k1_main(l)
        if l == 0:
            self.poll(sDBG, 128, 8, allwaves=True, pre=True)
        if t == 0:
            self.epi_a(l)
        else:
            self.epi_b(l)
        self.stamp(f"L{l}_epi")
        p(f"s_lshl_b32 s{sT0}, s{sRG}, 13\nv_lshl_add_u32 v{vSIG}, v{vLANE}, 8, s{sT0}")
        p.waitfor(["crit"])
        p("s_barrier")
        self.stamp(f"L{l}_oack")
        self.signal(sWS, CNT + l * 65536, nl=32)
        if t == 0:
            for q in range(8):
                self.emit_groups(self.wo_dma(0, q))
        self.src_srd(OF[l])
        p(f"s_lshl_b32 s{sK}, s{sROT2}, 12")
        p(f"v_add_u32 v{vBB}, {WO_L}, v{vLIN}\nv_add_u32 v{vHB}, {WO_L + 65536}, v{vLIN}")
        for i in range(16):
            p(f"v_lshlrev_b32 v{ACC+2*i}, 16, v{XRES+i}\nv_and_b32 v{ACC+2*i+1}, 0xffff0000, v{XRES+i}")
        p(f"s_lshl_b32 s{sT0}, s{sRB}, 4\ns_add_u32 s{sT0}, s{sT0}, s{sCB}\ns_lshl_b32 s{sT0}, s{sT0}, 8\nv_mov_b32 v{vSIG}, s{sT0}")
        self.poll(sWS, CNT + l * 65536, 32)
        p("s_waitcnt vmcnt(0)\ns_barrier")
        self.stamp(f"L{l}_S1")
        self.k2_main(l)
        for i in range(16):
            p(f"v_cvt_pk_bf16_f32 v{XRES+i}, v{ACC+2*i}, v{ACC+2*i+1}")
        if last:
            g, j = TMP + 1, TMP + 2
            p(f"v_lshrrev_b32 v{g}, 4, v{vLANE}\nv_and_b32 v{j}, 15, v{vLANE}")
            self.xrow_addr(TMP, g, j)
            p(f"s_mov_b32 s{sT0}, 0x10000")
            for b in range(2):
                for hf in range(2):
                    p(f"buffer_store_dwordx4 {vr(XRES+8*b+4*hf,4)}, v{TMP}, {SRD(sOUT)}, {'s%d'%sT0 if b else 0} offen offset:{64*hf}")
            return
        self.k2_store(l + 1)
        nt = 1 - t
        p(f"s_lshr_b32 s{sT0}, s{sRB}, 1\ns_lshl_b32 s{sT0}, s{sT0}, 13\nv_lshl_add_u32 v{vSIG}, v{vLANE}, 8, s{sT0}")
        if nt == 0:
            p(f"s_and_b32 s{sT1}, s{sRB}, 1\ns_sub_u32 s{sT1}, 0, s{sT1}\ns_and_b32 s{sT2}, s{sRB}, 7\ns_cmp_eq_u32 s{sT2}, 7\ns_cselect_b32 s{sT2}, 0, s{sT1}")
            p(f"s_and_b32 s{sT1}, s{sRG}, 3\ns_cmp_eq_u32 s{sT1}, 0\ns_cselect_b32 s{sEXP}, 32, 48")
        else:
            p(f"s_mov_b32 s{sT2}, 0\ns_mov_b32 s{sEXP}, 32")
        p.waitfor(["crit"])
        p("s_barrier")
        self.stamp(f"L{l}_xack")
        self.signal(sWS, CNT + (4 + l) * 65536, nl_sgpr=sT2)
        for c in range(2):
            self.emit_groups(self.w_dma(nt, c))
        self.src_srd(XF[l + 1])
        p(f"s_lshl_b32 s{sT0}, s{sRG}, 5\ns_add_u32 s{sT0}, s{sT0}, s{sH}\ns_lshl_b32 s{sT0}, s{sT0}, 8\nv_mov_b32 v{vSIG}, s{sT0}")
        self.poll(sWS, CNT + (4 + l) * 65536, f"s{sEXP}")
        p("s_waitcnt vmcnt(0)\ns_barrier")
        self.stamp(f"L{l}_S2")

    def build(self):
        p = self.p
        self.phase0()
        for l in range(self.nlayers):
            self.layer(l)
        if self.stamps:
            p("s_waitcnt vmcnt(0)")
            self.stamp("end")
            p(f"s_lshl_b32 s{sT0}, s2, 2\ns_add_u32 s{sT0}, s{sT0}, s{sWAVE}\ns_lshl_b32 s{sT0}, s{sT0}, 8\ns_add_u32 s{sT0}, s{sT0}, {hex(TS)}")
            p(f"v_lshlrev_b32 v{vT0}, 2, v{vLANE}\nbuffer_store_dword v{vTS}, v{vT0}, {SRD(sWS)}, s{sT0} offen")
            p(f"s_add_u32 s{sT0}, s{sT0}, 0x40000\nbuffer_store_dword v255, v{vT0}, {SRD(sWS)}, s{sT0} offen")
        if self.probe:
            p("s_waitcnt vmcnt(0)")
            self.stamp("end")
            p("s_sub_u32 s62, s62, s84\ns_lshl_b32 s62, s62, 2\ns_add_u32 s62, s62, 20000")
            p("L_spin:\ns_memrealtime s[86:87]\ns_waitcnt lgkmcnt(0)\ns_sub_u32 s86, s86, s84\ns_cmp_lt_u32 s86, s62\ns_cbranch_scc1 L_spin")
        p("L_end:\ns_endpgm")
        text, nnop = p.finalize()
        text += "L_code_end:\n"
        text = text.replace("CODE_BYTES", f"(L_code_end - {KNAME} - 64)")
        self.nnop = nnop
        return wrap([(KNAME, text, 512, 256, 102)], [(KNAME, 256, 256, 163840)])


if __name__ == "__main__":
    import argparse, json
    ap = argparse.ArgumentParser()
    ap.add_argument("-o", default="k.s")
    ap.add_argument("--stamps", action="store_true")
    ap.add_argument("--kw", default="{}")
    a = ap.parse_args()
    g = Gen(stamps=a.stamps, **json.loads(a.kw))
    s = g.build()
    if a.stamps:
        s = s.replace(".amdgcn_target", "; STAMPS " + ",".join(g.stnames) + "\n.amdgcn_target", 1)
    open(a.o, "w").write(s)
    print("nops", g.nnop, "bytes", len(s))
    for e in g.p.est:
        print(e)
```

```python
import re

TRANS = ("v_exp_f32", "v_log_f32", "v_rcp_f32", "v_rsq_f32", "v_sqrt_f32", "v_sin_f32", "v_cos_f32")
REG_RE = re.compile(r"(?<![\w.])([vas])(?:(\d+)|\[(\d+):(\d+)\])(?![\w])")


def regs_of(tok):
    out = []
    for m in REG_RE.finditer(tok):
        k = m.group(1)
        lo = int(m.group(2) if m.group(2) is not None else m.group(3))
        hi = int(m.group(2) if m.group(2) is not None else m.group(4))
        for r in range(lo, hi + 1):
            out.append(r if k == "v" else (256 + r if k == "a" else ("s", r)))
    for name in ("vcc", "exec", "m0"):
        if re.search(r"(?<![\w])" + name + r"(_lo|_hi)?(?![\w])", tok):
            out.append(name)
    return out


def isv(r):
    return isinstance(r, int)


class Inst:
    __slots__ = ("text", "op", "kind", "rd", "wr", "A", "B", "C", "D", "dpp", "wide", "xrd", "xwr", "waitregs", "nws", "passes")

    def __init__(self, text, xrd=(), xwr=()):
        self.text = text
        self.xrd = set(xrd)
        self.xwr = set(xwr)
        self.rd = set()
        self.wr = set()
        self.A = self.B = self.C = self.D = None
        self.dpp = False
        self.wide = False
        self.waitregs = None
        self.nws = 1
        self.passes = 0
        t = text.split(";")[0].strip()
        if t.endswith(":") or t.startswith("."):
            self.op = ""
            self.kind = "label"
            self.nws = 0
            return
        if not t:
            self.op = ""
            self.kind = "comment"
            self.nws = 0
            return
        parts = t.split(None, 1)
        op = self.op = parts[0]
        ops = [x.strip() for x in parts[1].split(",")] if len(parts) > 1 else []
        R = [regs_of(x) for x in ops]
        flat = lambda l: set(r for x in l for r in x)
        if op.startswith("v_mfma"):
            self.kind = "mfma"
            self.D, self.A, self.B, self.C = R[0], R[1], R[2], R[3]
            self.wr = set(R[0])
            self.rd = flat(R[1:]) | {"exec"}
            self.passes = 8 if "32x32x16" in op else 4
            assert "16x16x32" in op or "32x32x16" in op, op
        elif op.startswith("v_"):
            base = op.replace("_e32", "").replace("_e64", "").replace("_dpp", "")
            self.kind = "trans" if base in TRANS else "valu"
            self.dpp = "_dpp" in op or "row_" in t or "quad_perm" in t
            if op.startswith("v_permlane"):
                self.kind = "swap"
                self.wr = flat(R)
                self.rd = flat(R)
            else:
                self.wr = set(R[0])
                self.rd = flat(R[1:])
                if op.startswith(("v_fmac", "v_dot2c", "v_pk_fmac", "v_writelane")) or self.dpp:
                    self.rd |= set(R[0])
                assert not op.startswith(("v_cmpx", "v_add_co", "v_addc", "v_sub_co", "v_div_scale")), op
            self.rd.add("exec")
        elif op.startswith("ds_"):
            if op.startswith(("ds_read", "ds_bpermute", "ds_swizzle", "ds_permute")):
                self.kind = "dsr"
                self.wr = set(R[0])
                self.rd = flat(R[1:])
            else:
                self.kind = "dsw"
                self.rd = flat(R)
            self.rd.add("exec")
        elif op.startswith("buffer_load"):
            if re.search(r"\blds\b", t):
                self.kind = "dma"
                self.rd = flat(R) | {"m0"}
            else:
                self.kind = "vld"
                self.wr = set(R[0])
                self.rd = flat(R[1:])
            self.rd.add("exec")
        elif op.startswith(("buffer_store", "buffer_atomic")):
            self.kind = "vst"
            self.rd = flat(R) | {"exec"}
            self.wide = op.endswith(("x3", "x4"))
            self.D = R[0]
        elif op == "s_waitcnt":
            self.kind = "wait"
        elif op == "s_barrier":
            self.kind = "barrier"
        elif op == "s_nop":
            self.kind = "nop"
            self.nws = int(ops[0]) + 1
        elif op.startswith(("s_cbranch", "s_branch", "s_endpgm", "s_setpc", "s_swappc")):
            self.kind = "branch"
            self.rd = {"scc", "vcc", "exec"}
        elif op.startswith(("s_load", "s_memtime", "s_memrealtime")):
            self.kind = "smem"
            self.wr = set(R[0])
            self.rd = flat(R[1:])
        elif op in ("s_sleep", "s_setprio"):
            self.kind = "salu"
        elif op.startswith("s_"):
            self.kind = "salu"
            if op.startswith(("s_cmp", "s_bitcmp")):
                self.rd = flat(R)
                self.wr = {"scc"}
            else:
                self.wr = set(R[0])
                self.rd = flat(R[1:])
                if not op.startswith(("s_mov", "s_mul_i32", "s_cselect", "s_getpc", "s_mul_hi", "s_getreg")):
                    self.wr.add("scc")
                if op.startswith(("s_cselect", "s_addc", "s_subb")):
                    self.rd.add("scc")
                if op.startswith(("s_addk", "s_mulk")):
                    self.rd |= set(R[0])
                if "saveexec" in op:
                    self.rd.add("exec")
                    self.wr.add("exec")
        else:
            raise ValueError("unknown instruction: " + text)


ISSUE = {"valu": 4, "trans": 8, "swap": 8, "mfma": 8, "dsr": 8, "dsw": 12, "vld": 12, "vst": 16, "dma": 12, "salu": 4, "nop": 4, "smem": 4}


def pipe_cost(x):
    if x.kind == "dsr":
        return 16 if "b128" in x.op else 8
    if x.kind == "dsw":
        return 52 if "b128" in x.op else 24
    if x.kind in ("vld", "vst", "dma"):
        return 64 if "x4" in x.op else 32
    return 0


def latency(p, c):
    k = p.kind
    if k == "mfma":
        if c.kind == "mfma" and c.C == p.D and not (set(p.D) & (set(c.A) | set(c.B))):
            return 4 * p.passes
        return 4 * p.passes + 24
    if k in ("valu", "swap"):
        if c.kind in ("mfma", "swap") or c.dpp:
            return ISSUE[k] + 8
        if not isv(next(iter(p.wr))) and c.kind in ("valu",):
            return ISSUE[k] + 8
        return ISSUE[k]
    if k == "trans":
        return 12 if c.kind != "mfma" else 16
    if k == "dsr":
        return 120
    if k == "dsw":
        return 16
    if k == "vld":
        return 800
    return 4


def schedule(insts):
    n = len(insts)
    preds = [dict() for _ in range(n)]
    lastw = {}
    readers = {}
    for i, x in enumerate(insts):
        assert x.kind not in ("label", "branch", "wait", "barrier", "comment") and x.waitregs is None, x.text
        rd = set(x.rd) | x.xrd
        wr = set(x.wr) | x.xwr
        if x.kind in ("dsr", "dsw") and not (x.xrd or x.xwr) and not x.op.startswith(("ds_bpermute", "ds_swizzle")):
            wr.add("ldsall")
        if x.kind in ("vld", "vst", "dma"):
            wr.add("vmemorder")
        for r in rd:
            if r in lastw:
                j = lastw[r]
                preds[i][j] = max(preds[i].get(j, 0), latency(insts[j], x))
        for r in wr:
            if r in lastw:
                j = lastw[r]
                l = latency(insts[j], x) if (isv(r) and insts[j].kind in ("mfma", "dsr", "vld")) else 1
                if insts[j].kind == "mfma" and x.kind == "mfma":
                    l = 4 * insts[j].passes
                preds[i][j] = max(preds[i].get(j, 0), l)
            for j in readers.get(r, ()):
                if j != i:
                    l = 1
                    if insts[j].kind == "mfma" and x.kind != "mfma" and r in (insts[j].C or ()):
                        l = 20
                    if insts[j].kind == "vst" and insts[j].wide:
                        l = 16
                    preds[i][j] = max(preds[i].get(j, 0), l)
        for r in rd:
            readers.setdefault(r, []).append(i)
        for r in wr:
            lastw[r] = i
            readers[r] = []
    succs = [[] for _ in range(n)]
    for i in range(n):
        for j, l in preds[i].items():
            succs[j].append((i, l))
    prio = [0] * n
    for i in range(n - 1, -1, -1):
        prio[i] = ISSUE[insts[i].kind] + max([0] + [prio[j] + l - 0 for j, l in succs[i]])
    npred = [len(p) for p in preds]
    est = [0] * n
    ready = [i for i in range(n) if npred[i] == 0]
    now = 0
    mfree = 0
    mlast = memlast = -100
    dsfree = vmfree = 0
    out = []
    times = []
    while ready:
        def start(i):
            s = est[i]
            k = insts[i].kind
            if k == "mfma":
                s = max(s, mfree)
            elif k in ("dsr", "dsw"):
                s = max(s, dsfree - 24, memlast + 16)
            elif k in ("vld", "vst", "dma"):
                s = max(s, vmfree - 64, memlast + 16)
            elif insts[i].op.startswith("v_pk_"):
                s = max(s, mlast + 26)
            return s
        can = [i for i in ready if start(i) <= now]
        if out and out[-1].op.startswith("v_pk_"):
            alt = [i for i in can if insts[i].kind != "mfma"]
            npk = [i for i in alt if not insts[i].op.startswith("v_pk_")]
            if len(alt) != len(can):
                can = npk or can
        if can:
            i = max(can, key=lambda i: (prio[i], -i))
        else:
            i = min(ready, key=lambda i: (start(i), -prio[i], i))
            now = start(i)
        ready.remove(i)
        out.append(insts[i])
        times.append(now)
        if insts[i].kind == "mfma":
            mfree = now + 4 * insts[i].passes
            mlast = now
        elif insts[i].kind in ("dsr", "dsw"):
            dsfree = max(dsfree, now) + pipe_cost(insts[i])
        elif insts[i].kind in ("vld", "vst", "dma"):
            vmfree = max(vmfree, now) + pipe_cost(insts[i])
            memlast = now
        for j, l in succs[i]:
            est[j] = max(est[j], now + l)
            npred[j] -= 1
            if npred[j] == 0:
                ready.append(j)
        now += ISSUE[insts[i].kind]
    assert len(out) == n
    schedule.times = times
    return out, now


class Prog:
    def __init__(self):
        self.insts = []
        self.nlabel = 0
        self._blk = None
        self.est = []

    def __call__(self, s, rd=(), wr=()):
        tgt = self.insts if self._blk is None else self._blk
        for l in s.split("\n"):
            l = l.strip()
            if l:
                tgt.append(Inst(l, rd, wr))

    def add(self, inst):
        (self.insts if self._blk is None else self._blk).append(inst)

    def c(self, s):
        if self._blk is None:
            self.insts.append(Inst("; " + s))

    def label(self, base="L"):
        self.nlabel += 1
        return f"{base}_{self.nlabel}"

    def begin(self):
        assert self._blk is None
        self._blk = []

    def end(self, name="", insert=()):
        blk, self._blk = self._blk, None
        out, t = schedule(blk)
        times = list(schedule.times)
        for before, xs in insert:
            idx = len([tt for tt in times if tt < t - before])
            xs = [x if isinstance(x, Inst) else Inst(x) for x in xs]
            out[idx:idx] = xs
            times[idx:idx] = [t - before] * len(xs)
        self.est.append((name, len(out), t))
        self.insts.append(Inst(f"; --- scheduled block {name}: {len(out)} instrs, est {t} cyc"))
        self.insts.extend(out)

    def end_list(self, name=""):
        blk, self._blk = self._blk, None
        out, t = schedule(blk)
        self.est.append((name, len(out), t))
        return out

    def waitfor(self, regs):
        x = Inst("; waitfor")
        x.waitregs = set(regs)
        self.add(x)

    def finalize(self):
        return finalize(self.insts)


def waitfor_inst(regs):
    x = Inst("; waitfor")
    x.waitregs = set(regs)
    return x


def parse_wait(t):
    vm = re.search(r"vmcnt\((\d+)\)", t)
    lg = re.search(r"lgkmcnt\((\d+)\)", t)
    return (int(vm.group(1)) if vm else None, int(lg.group(1)) if lg else None)


def finalize(insts):
    out = []
    vmq = []
    lgq = []
    smem_pending = False
    pos = 0
    lw = {}
    cread = {}
    stread = {}
    nnop = 0
    lastpk = None

    def emit(x):
        nonlocal pos
        out.append(x.text if x.kind == "label" else "    " + x.text)
        pos += x.nws

    def need(q, regs):
        idx = -1
        for i, d in enumerate(q):
            if d & regs:
                idx = i
        return None if idx < 0 else len(q) - idx - 1

    def do_wait(regs):
        nonlocal vmq, lgq
        v = need(vmq, regs)
        l = need(lgq, regs)
        if v is None and l is None:
            return
        s = "s_waitcnt"
        if v is not None:
            v = min(v, 62)
            s += f" vmcnt({v})"
            vmq = vmq[len(vmq) - v:] if v else []
        if l is not None:
            if smem_pending:
                l = 0
            l = min(l, 14)
            s += f" lgkmcnt({l})"
            lgq = lgq[len(lgq) - l:] if l else []
        emit(Inst(s))

    for x in insts:
        if x.waitregs is not None:
            do_wait(x.waitregs)
            continue
        if x.kind == "comment":
            out.append("    " + x.text)
            continue
        if x.kind in ("label", "branch"):
            if x.kind == "branch" or x.text.endswith(":"):
                pend = [d for d in vmq + lgq if any(isv(r) or (isinstance(r, tuple) and r[0] == 's') for r in d)]
                assert not pend or "keep" in x.text, f"pending loads {pend[:2]} across {x.text}"
            emit(x)
            continue
        if x.kind == "wait":
            v, l = parse_wait(x.text)
            if v is not None:
                vmq = vmq[len(vmq) - v:] if (v and v < len(vmq)) else ([] if v == 0 else vmq)
            if l is not None:
                lgq = lgq[len(lgq) - l:] if (l and l < len(lgq)) else ([] if l == 0 else lgq)
                if l == 0:
                    smem_pending = False
            emit(x)
            continue
        do_wait(x.rd | x.wr)
        req = 0

        def dist(p):
            return pos - p - 1

        def want(p, n):
            nonlocal req
            req = max(req, n - dist(p))

        isvalu = x.kind in ("valu", "trans", "swap")
        ismem = x.kind in ("dsr", "dsw", "vld", "vst", "dma")
        for r in x.rd | x.wr:
            if r not in lw:
                continue
            p, w = lw[r]
            rdr = r in x.rd
            if w.kind == "mfma":
                big = {4: 8, 8: 12}[w.passes]
                if isvalu or ismem:
                    want(p, big)
                elif x.kind == "mfma":
                    if r in x.A or r in x.B:
                        want(p, big)
                    elif r in x.C and not (x.C == w.D and x.passes == w.passes):
                        want(p, big - 2)
            elif w.kind in ("valu", "trans", "swap"):
                if isv(r):
                    if rdr and x.kind == "mfma":
                        want(p, 2)
                    if rdr and (x.kind == "swap" or x.dpp):
                        want(p, 2)
                    if rdr and x.op.startswith(("v_readfirstlane", "v_readlane")):
                        want(p, 1)
                    if rdr and w.kind == "trans" and x.kind != "trans":
                        want(p, 1)
                    if w.op.startswith("v_dot2") and not (x.op == w.op and r in x.wr):
                        want(p, 3)
                else:
                    if rdr and isvalu:
                        want(p, 4 if x.op.startswith(("v_readlane", "v_writelane")) else 2)
                    if rdr and x.kind in ("vld", "vst", "dma"):
                        want(p, 5)
                    if rdr and x.kind == "salu":
                        want(p, 1)
            elif w.kind == "salu":
                if r == "m0" and x.kind == "dma":
                    want(p, 1)
        if isvalu:
            for r in x.wr:
                if r in cread:
                    want(cread[r][0], cread[r][1] - 1)
                if r in stread:
                    want(stread[r], 2)
        elif x.kind in ("dsr", "vld", "mfma"):
            for r in x.wr:
                if r in stread:
                    want(stread[r], 1)
        if x.kind == "mfma" and lastpk is not None:
            want(lastpk, 1)
        if req > 0:
            nnop += req
            emit(Inst(f"s_nop {req-1}"))
        p = pos
        emit(x)
        if x.kind in ("valu", "trans", "swap", "mfma", "salu"):
            for r in x.wr:
                lw[r] = (p, x)
        else:
            for r in x.wr:
                lw.pop(r, None)
        if x.op.startswith("v_pk_"):
            lastpk = p
        if x.kind == "mfma":
            for r in x.C:
                cread[r] = (p, x.passes)
        if x.kind == "vst" and x.wide:
            for r in x.D:
                stread[r] = p
        if x.kind in ("vld", "vst", "dma"):
            vmq.append(set(x.wr) | x.xwr)
            assert len(vmq) <= 200
        if x.kind in ("dsr", "dsw"):
            lgq.append(set(x.wr) | x.xwr)
        if x.kind == "smem":
            smem_pending = True
            lgq.append(set(x.wr))
    return "\n".join(out) + "\n", nnop


class Weave:
    def __init__(self, mf_steps):
        self.steps = mf_steps
        self.base = []
        n = 0
        for st in mf_steps:
            self.base.append(n)
            n += len(st)
        self.n = n
        self.gap = [[] for _ in range(n)]
        self.load = [0.0] * n
        self.mem = [0] * n
        self.pre = {}
        for s in range(1, len(mf_steps)):
            self.load[self.base[s] - 1] += 1
        self.over = 0
        self.vbusy = [0] * n

    @staticmethod
    def vcost(x):
        m = re.search(r";c(\d+)", x.text)
        if m:
            return int(m.group(1))
        if x.kind == "vst" and "x4" in x.op:
            return 8
        return 2 if x.op == "buffer_load_dword" else 4

    def g(self, step, i=0):
        if step >= len(self.steps):
            return self.n - 1
        return self.base[step] + (i if i >= 0 else len(self.steps[step]) + i)

    @staticmethod
    def w(x):
        return {"salu": 0.67, "trans": 2, "swap": 2, "mfma": 2}.get(x.kind, 1)

    def fits(self, x, g, relax=False):
        ismem = x.kind in ("dsr", "dsw", "vld", "vst", "dma")
        if ismem and (self.mem[g] or any(y.kind != "salu" for y in self.gap[g])):
            return False
        if x.kind in ("vld", "vst", "dma") and not relax:
            c = self.vcost(x)
            if any(self.vbusy[g:g + c]):
                return False
        if not relax and x.kind in ("valu", "trans", "swap") and any(y.kind in ("vld", "vst", "dma") for y in self.gap[g]):
            return False
        return self.load[g] + self.w(x) <= 2.02

    def put(self, x, g):
        self.gap[g].append(x)
        self.load[g] += self.w(x)
        if x.kind in ("dsr", "dsw", "vld", "vst", "dma"):
            self.mem[g] += 1
        if x.kind in ("vld", "vst", "dma"):
            for i in range(g, min(self.n, g + self.vcost(x))):
                self.vbusy[i] = 1

    def stream(self, lo, hi, insts, hard=None, squeeze=False):
        insts = [x if isinstance(x, Inst) else Inst(x) for x in insts]
        hard = self.n - 1 if hard is None else hard
        anymem = any(x.kind in ("dsr", "dsw", "vld", "vst", "dma") for x in insts)
        wts = [3 if x.kind in ("dsr", "dsw", "vld", "vst", "dma") else (0 if anymem else self.w(x)) for x in insts]
        tot = sum(wts)
        cur = lo
        acc = 0
        prev = None
        for i, (x, wt) in enumerate(zip(insts, wts)):
            tgt = lo + int(acc / tot * (hi - lo + 1)) if wt else cur
            acc += wt
            if "scc" in x.rd:
                self.put(x, cur)
                prev = x
                continue
            extra = self.w(insts[i + 1]) if i + 1 < len(insts) and "scc" in insts[i + 1].rd else 0
            g = max(cur, tgt)
            if prev is not None and g == cur and x.kind == "dma" and "m0" in prev.wr:
                g += 1
            g0 = min(g, hard)
            ok = lambda g, relax: self.fits(x, g, relax) and self.load[g] + self.w(x) + extra <= 2.02
            g = g0
            lim = hard
            if squeeze and wt:
                rem = sum(1 for w_ in wts[i:] if w_)
                lim = min(hard, g0 + max(1, (hard - g0) // rem))
            while g < lim and not ok(g, False):
                g += 1
            if not ok(g, False):
                g = g0
                while g < hard and not ok(g, True):
                    g += 1
                if not ok(g, True):
                    self.over += 1
            self.put(x, g)
            cur = g
            prev = x
        return cur

    def vmem_plan(self, base, extras, minrate=0.0, first=1):
        I = lambda xs: [x if isinstance(x, Inst) else Inst(x) for x in xs]
        isv_ = lambda x: x.kind in ("vld", "vst", "dma")
        base = [I(b) for b in base]
        ns = len(self.steps)
        items = []
        for name, lo, hi, xs in extras:
            pre = []
            for x in I(xs):
                if isv_(x):
                    items.append((name, lo, hi, pre, x))
                    pre = []
                else:
                    pre.append(x)
            assert not pre
        bcost = [sum(self.vcost(x) for x in b if isv_(x)) for b in base]
        top = max(bcost)

        def assign(level):
            out = []
            s, used = 0, 0.0
            for name, lo, hi, pre, x in items:
                c = self.vcost(x)
                if name[0] == "!":
                    out.append(lo)
                    continue
                if s < lo:
                    s, used = lo, 0.0
                while s < ns and used + c / 2 > level - bcost[s]:
                    used = max(0.0, used - (level - bcost[s])) if level > bcost[s] else used
                    used = min(used, c / 2)
                    s += 1
                if s > hi:
                    return None
                out.append(s)
                used += c
            return out
        level = top + minrate
        while True:
            asg = assign(level)
            if asg is not None:
                break
            level += 0.25
        lastg = 0
        rep = {}
        for s in range(ns):
            n = len(self.steps[s])
            bv = [x for x in base[s] if isv_(x)]
            ev = [it for it, a in zip(items, asg) if a == s]
            seq = []
            nb, ne = len(bv), len(ev)
            i = j = 0
            while i < nb or j < ne:
                if j >= ne or (i < nb and i * (ne + 1) <= j * nb + nb // 2 + (0 if ne else 99)):
                    seq.append((None, bv[i])); i += 1
                else:
                    seq.append((ev[j], ev[j][4])); j += 1
            tot = sum(self.vcost(x) for _, x in seq)
            cum = 0
            lastb = None
            for it, x in seq:
                g = self.g(s) + min(n - 1, first + int(cum * n / max(tot, 1)))
                cum += self.vcost(x)
                if it is not None:
                    rep.setdefault(it[0], [s, s])[1] = s
                    if it[3]:
                        c = self.stream(lastg, lastg, it[3], hard=max(lastg, g - 1))
                        g = max(g, min(c + 1, self.g(s, -1)))
                while self.mem[g] and g < self.g(s, -1):
                    g += 1
                self.put(x, g)
                if it is not None:
                    lastg = g
                else:
                    lastb = g
            tail = [x for x in base[s] if not isv_(x)]
            if tail:
                self.stream(lastb, lastb, tail, hard=min(self.n - 1, self.g(s, -1) + first))
        return f"level {level:.2f} " + " ".join(f"{k}:{a}-{b}" for k, (a, b) in rep.items())

    def emit(self, p):
        for s, st in enumerate(self.steps):
            for x in self.pre.get(s, []):
                if callable(x):
                    x()
                else:
                    p.add(x if isinstance(x, Inst) else Inst(x))
            for i, m in enumerate(st):
                p(m)
                for x in self.gap[self.base[s] + i]:
                    p.add(x)
```

```python
import sys, math, struct, re
from asmlib import KNAME, wrap, vr, ar, sr, reg
from ir import Prog, Inst, waitfor_inst, Weave, schedule

MB = 1 << 20
CNT = 0
TS = 1 * MB
ST = [2 * MB + l * 256 * 1024 for l in range(4)]
CS = [3 * MB + t * 512 * 1024 for t in range(2)]
KVP = [4 * MB + i * 2 * MB for i in range(2)]
KVZ = [8 * MB + i * 128 * 1024 for i in range(2)]
WOP = [10 * MB + t * 2 * MB for t in range(2)]
WP = [14 * MB + t * 6 * MB for t in range(2)]
XF = [26 * MB + 8 * l * MB for l in range(4)]
OF = [30 * MB + 8 * l * MB for l in range(4)]
OOB = 0x40000000
I_S1 = lambda l: l
I_S2 = lambda l: 4 + l
I_KV = lambda l: 8 + l // 2
EPOCH = 15 * 65536
HINT = 128

sWS, sX, sOUT, sDBG, sIN, sCODE, sSRC = 4, 8, 12, 16, 20, 24, 40
sWAVE, sRG, sH, sRB, sCB, sROT1, sROT2 = 28, 29, 30, 31, 32, 33, 34
sK, sT0, sT1, sT2, sT3, sD, sPC = 35, 36, 37, 38, 39, 44, 45
sM1, sM2 = 46, 48
sWB, sWOB = 50, 51
sTSP = 52
sEXP, sHB = 54, 55
sZ0, sZ1 = 56, 58
sP = 64
sSTB, sSTH, sKH = 82, 83, 63
sS0, sS1, sC0, sPO = 88, 89, 90, 91
sSGA, sSGB, sSGC, sRETRY = 92, 93, 94, 95
sR = 96
sM8 = 64
sID1, sID2, sIDK = 66, 67, 70
sG1B, sG2B, sG2H, sGKB = 71, 78, 79, 80
sJ, sI4 = 3, 81
I_G1 = 12
sRP = sK
SRD = lambda s: f"s[{s}:{s+3}]"

vLANE, vLIN, vA1, vH1, vA2, vBB, vHB, vTW, vTR, vHW, vSM, vT0, vONE, vTS, vST, vSTH = range(16)
ONES = 16
BIASP, BIASC, MASKP, MASKC = 20, 24, 28, 30
XRES = 32
CSUM = 48
BIASP0, MASKP0 = 76, 80
STAT = 82
LAND = 92
ACC = 132
ACCH = 228
TMP = 232
vG2S, vG2L = TMP + 20, TMP + 23
vSO, vDUP = TMP + 21, TMP + 22
acc = lambda rb, cb: ACC + rb * 24 + cb * 4
A_ = 256
RING = A_ + 0
HA = A_ + 64
DUMMY = A_ + 76
ACCH16 = A_ + 80
BFR = A_ + 96
PARK = [A_ + 160, A_ + 188]
RPK = A_ + 188
POIS = A_ + 228
WPHI = A_ + 232
REG = 49152
WO_L = 32768
LV, LK, LPHI = 0, 20480, 16384
LFLAG = {0: 28672, 1: 163840 - 16}
S_B, S_AO, S_BO, S_PHI = 2 * REG, 2 * REG + 24576, 2 * REG + 32768, 2 * REG + 40960

LOG2E = 1.4426950408889634


def fhex(x):
    return hex(struct.unpack("<I", struct.pack("<f", x))[0])


def mfma(d, a, b, c):
    cs = "0" if c is None else reg(c, 4)
    return f"v_mfma_f32_16x16x32_bf16 {reg(d,4)}, {reg(a,4)}, {reg(b,4)}, {cs}"


def rr(base, n):
    return list(range(base, base + n))


def L(s):
    return [x.strip() for x in s.split("\n") if x.strip()]


class Gen:
    def __init__(self, stamps=False, rot1=16, rot2=16, D=4, D2=6, nlayers=4, probe=None, fine=None, spec1=False, speck=False,
                 nq1=4, npq=8, eh1=500, ehk=300, wo_epi=(2, 2), wo_loop=(6, 7), rate=0.0, npro=None, force_fail=False, dbg="", pi1=0, pi2=1, wlead=False, reuse=True, nt=True, wsoff=0, paux="atomic", psleep=0, map2=1):
        self.p = Prog()
        self.stamps = stamps
        self.nst = 0
        self.stnames = []
        self.rot1, self.rot2, self.D, self.D2 = rot1, rot2, D, D2
        self.nlayers, self.probe, self.fine, self.spec1, self.speck = nlayers, probe, fine, spec1, speck
        self.nq1, self.npq, self.eh1, self.ehk, self.wo_loop, self.wo_epi = nq1, npq, eh1, ehk, wo_loop, wo_epi
        self.dbg = dbg
        self.nt = " nt" if nt else ""
        self.wsoff = wsoff
        self.paux, self.psleep, self.map2 = paux, psleep, map2
        self.reuse = reuse
        if reuse:
            self.XF = [None, XF[1], None, XF[1]]
            self.OF = [OF[0]] * 4
            self.KVP = [KVP[0]] * 2
        else:
            self.XF, self.OF, self.KVP = XF, OF, KVP
        self.rate = rate
        self.info = []
        self.pi1, self.pi2, self.wlead = pi1, pi2, wlead
        self.tail = []
        self.over = 0

    def stamp(self, name):
        if self.probe and name == self.probe:
            self.p("s_memrealtime s[86:87]\ns_waitcnt lgkmcnt(0)")
        if not self.stamps:
            return
        p = self.p
        p(f"s_memrealtime s[{sTSP}:{sTSP+1}]\ns_memtime s[60:61]\ns_waitcnt lgkmcnt(0)\nv_accvgpr_read_b32 v{vTS}, a240\nv_writelane_b32 v{vTS}, s{sTSP}, {self.nst}\nv_accvgpr_write_b32 a240, v{vTS}")
        p(f"v_accvgpr_read_b32 v{vTS}, a241\nv_writelane_b32 v{vTS}, s60, {self.nst}\nv_accvgpr_write_b32 a241, v{vTS}")
        self.stnames.append(name)
        self.nst += 1

    def count_retry(self):
        if self.stamps:
            self.p(f"v_accvgpr_read_b32 v{vTS}, a240\nv_readlane_b32 s60, v{vTS}, 63\ns_add_u32 s60, s60, 1\nv_writelane_b32 v{vTS}, s60, 63\nv_accvgpr_write_b32 a240, v{vTS}")

    def srd(self, s, lo, size):
        self.p(f"s_mov_b32 s{s}, s{lo}\ns_mov_b32 s{s+1}, s{lo+1}\ns_mov_b32 s{s+2}, {hex(size)}\ns_mov_b32 s{s+3}, 0x20000")

    def src_srd(self, off):
        if off is None:
            self.p(f"s_mov_b64 s[{sSRC}:{sSRC+1}], s[{sOUT}:{sOUT+1}]")
            return
        self.p(f"s_add_u32 s{sSRC}, s{sWS}, {hex(off)}\ns_addc_u32 s{sSRC+1}, s{sWS+1}, 0")

    def emit(self, xs):
        for x in xs:
            self.p.add(x if isinstance(x, Inst) else Inst(x))

    def sig(self, s, v=vSM):
        return f"buffer_atomic_add v{vONE}, v{v}, {SRD(sWS)}, s{s} offen sc1"

    def poll(self, idreg, off, exp, allwaves=False, srd=sWS, vaddr=None, pre=False, sleep=0):
        p = self.p
        Lp, E = p.label("Lpoll"), p.label("Lpe")
        if not allwaves:
            p(f"s_cmp_lg_u32 s{sWAVE}, 0\ns_cbranch_scc1 {E}")
        if pre:
            p(f"v_cmp_gt_u32 vcc, {exp}, v{vT0}\ns_cbranch_vccz {E}")
        p(f"s_add_u32 s{sT0}, s{idreg}, {hex(off)}" if idreg is not None else f"s_mov_b32 s{sT0}, {hex(off)}")
        p(f"s_mov_b32 s{sT1}, 0")
        p(f"{Lp}:")
        if sleep:
            p(f"s_sleep {sleep}")
        if vaddr is None and self.psleep:
            p(f"s_sleep {self.psleep}")
        if vaddr is None and self.paux == "atomic":
            p(f"v_mov_b32 v{vT0}, 0\ns_mov_b64 exec, 1\nbuffer_atomic_add v{vT0}, off, {SRD(srd)}, s{sT0} sc0 sc1\ns_waitcnt vmcnt(0)\nv_readfirstlane_b32 s{sT2}, v{vT0}\ns_mov_b64 exec, -1\nv_mov_b32 v{vT0}, s{sT2}")
        elif vaddr is None:
            p(f"buffer_load_dword v{vT0}, off, {SRD(srd)}, s{sT0} {self.paux}")
        else:
            p(f"buffer_load_dword v{vT0}, v{vaddr}, {SRD(srd)}, s{sT0} offen sc1")
        p(f"s_add_u32 s{sT1}, s{sT1}, 1")
        p(f"v_cmp_gt_u32 vcc, {exp}, v{vT0}")
        p(f"s_cbranch_vccz {E}")
        p(f"s_cmp_lt_u32 s{sT1}, 0x100000\ns_cbranch_scc1 {Lp}")
        p(f"{E}:")

    def knext(self, pi, s):
        if not pi:
            return [f"s_add_u32 s{sK}, s{sK}, 4096", f"s_and_b32 s{sK}, s{sK}, 0x1ffff"]
        if s >= 32:
            return []
        return [f"s_cmp_eq_u32 s{sJ}, {s % 8}", f"s_cselect_b32 s{sK}, {(s + 8) % 32}, {s}", f"s_lshl_b32 s{sK}, s{sK}, 12"]

    def kfirst(self, pi, rot):
        return self.knext(pi, 0) if pi else [f"s_lshl_b32 s{sK}, s{rot}, 12"]

    def kmap(self, pi, rot, d, tmp):
        if not pi:
            return [f"s_add_u32 s{d}, s{d}, s{rot}", f"s_and_b32 s{d}, s{d}, 31"]
        return [f"s_and_b32 s{tmp}, s{d}, 7", f"s_cmp_eq_u32 s{tmp}, s{sJ}", f"s_cselect_b32 s{tmp}, 8, 0", f"s_add_u32 s{d}, s{d}, s{tmp}", f"s_and_b32 s{d}, s{d}, 31"]

    def w_piece(self, t, c):
        g = [f"s_mul_i32 s{sPC}, s{sD}, 3072", f"s_add_u32 m0, s{sPC}, {(c%3)*REG}", f"s_lshr_b32 s{sD}, s{sD}, 1", f"s_add_u32 s{sD}, s{sD}, {8*c}"]
        g += self.kmap(self.pi1, sROT1, sD, sPC)
        g += [f"s_mul_i32 s{sD}, s{sD}, 6144", f"s_add_u32 s{sD}, s{sD}, s{sWB}"]
        if t:
            g += [f"s_add_u32 s{sD}, s{sD}, {hex(WP[1]-WP[0])}"]
        for u in range(3):
            g.append(Inst(f"buffer_load_dwordx4 v{vLIN}, {SRD(sWS)}, s{sD} offen offset:{u*1024} sc1 lds", xwr=[("W", c)]))
        return g

    def w_dma(self, t, q0, q1):
        g = []
        for qq in range(q0, q1):
            c, q = qq // 4, qq % 4
            if self.wlead:
                g += [f"s_add_u32 s{sD}, s{sI4}, {q}", f"s_and_b32 s{sD}, s{sD}, 3", f"s_lshl_b32 s{sD}, s{sD}, 2", f"s_add_u32 s{sD}, s{sD}, s{sWAVE}"]
            else:
                g += [f"s_add_u32 s{sD}, s{sWAVE}, {4*q}"]
            g += self.w_piece(t, c)
        return g

    def w_dma2(self, t, q0, q1):
        p = self.p
        E = p.label("Lwd")
        p(f"s_cmp_lt_u32 s{sWAVE}, 2\ns_cbranch_scc1 {E}")
        for qq in range(q0, q1):
            c, q = qq // 4, qq % 4
            for h in range(2):
                if self.wlead:
                    self.emit([f"s_add_u32 s{sD}, s{sI4}, {q}", f"s_and_b32 s{sD}, s{sD}, 3", f"s_lshl_b32 s{sD}, s{sD}, 2", f"s_add_u32 s{sD}, s{sD}, s{sWAVE}",
                               f"s_sub_u32 s{sD}, s{sD}, {2*h}"])
                else:
                    p(f"s_add_u32 s{sD}, s{sWAVE}, {4*q - 2*h}" if 4*q - 2*h >= 0 else f"s_sub_u32 s{sD}, s{sWAVE}, {2*h - 4*q}")
                self.emit(self.w_piece(t, c))
        p(f"{E}:")

    def wo_dma(self, t, q):
        g = [f"s_add_u32 s{sD}, s{sWAVE}, {4*q}", f"s_lshl_b32 s{sPC}, s{sD}, 12", f"s_add_u32 m0, s{sPC}, {WO_L}"]
        g += self.kmap(self.pi2, sROT2, sD, sPC)
        g += [f"s_lshl_b32 s{sD}, s{sD}, 12", f"s_add_u32 s{sD}, s{sD}, s{sWOB}"]
        if t:
            g += [f"s_add_u32 s{sD}, s{sD}, {hex(WOP[1]-WOP[0])}"]
        for u in range(4):
            g.append(Inst(f"buffer_load_dwordx4 v{vLIN}, {SRD(sWS)}, s{sD} offen offset:{u*1024} sc1 lds", xwr=[("WO", q)]))
        return g

    def setup(self):
        p = self.p
        p("s_cmp_ge_u32 s2, 256\ns_cbranch_scc1 L_end")
        p(f"s_load_dwordx16 s[{sP}:{sP+15}], s[0:1], 0\ns_load_dwordx4 s[{sP+16}:{sP+19}], s[0:1], 64")
        p(f"s_getpc_b64 s[{sCODE}:{sCODE+1}]")
        p(f"s_mov_b32 s{sCODE+2}, CODE_BYTES\ns_mov_b32 s{sCODE+3}, 0x20000\nv_lshlrev_b32 v1, 5, v0")
        p(f"buffer_load_dword v{TMP+6}, v1, {SRD(sCODE)}, 0 offen")
        if self.probe:
            p("s_memrealtime s[84:85]\ns_memrealtime s[86:87]")
        p(f"v_lshrrev_b32 v1, 6, v0\nv_and_b32 v{vLANE}, 63, v0\nv_readfirstlane_b32 s{sWAVE}, v1")
        if self.stamps:
            p(f"v_accvgpr_write_b32 a240, 0\nv_accvgpr_write_b32 a241, 0")
        p(f"s_and_b32 s{sT0}, s2, 7\ns_lshr_b32 s{sT1}, s2, 3")
        p(f"s_and_b32 s{sT2}, s{sT1}, 3\ns_lshr_b32 s{sT3}, s{sT1}, 2")
        p(f"s_and_b32 s{sRG}, s{sT0}, 1\ns_lshl_b32 s{sCB}, s{sRG}, 3\ns_lshl_b32 s{sRG}, s{sRG}, 2\ns_add_u32 s{sRG}, s{sRG}, s{sT2}")
        p(f"s_add_u32 s{sCB}, s{sCB}, s{sT3}")
        p(f"s_lshr_b32 s{sT0}, s{sT0}, 1\ns_lshl_b32 s{sH}, s{sT0}, 3\ns_add_u32 s{sH}, s{sH}, s{sT3}")
        p(f"s_lshl_b32 s{sRB}, s{sT0}, 2\ns_add_u32 s{sRB}, s{sRB}, s{sT2}")
        if self.map2:
            p(f"s_and_b32 s{sCB}, s{sT0}, 1\ns_lshl_b32 s{sCB}, s{sCB}, 3\ns_add_u32 s{sCB}, s{sCB}, s{sT3}")
            p(f"s_and_b32 s{sRB}, s2, 1\ns_lshl_b32 s{sRB}, s{sRB}, 3\ns_add_u32 s{sRB}, s{sRB}, s{sT2}\ns_and_b32 s{sJ}, s2, 4\ns_add_u32 s{sRB}, s{sRB}, s{sJ}")
        p(f"s_mov_b32 s{sJ}, s{sT3}")
        if "oldrp" in self.dbg:
            p(f"s_mov_b32 s{sRP}, s2")
        else:
            p(f"s_and_b32 s{sRP}, s2, 7\ns_lshl_b32 s{sRP}, s{sRP}, 5\ns_add_u32 s{sRP}, s{sRP}, s{sT1}")
        p(f"s_mul_i32 s{sROT1}, s{sT3}, {self.rot1}\ns_and_b32 s{sROT1}, s{sROT1}, 31")
        p(f"s_mul_i32 s{sROT2}, s{sT3}, {self.rot2}\ns_and_b32 s{sROT2}, s{sROT2}, 31")
        p(f"v_lshlrev_b32 v{vLIN}, 4, v{vLANE}")
        g, j = TMP + 1, TMP + 2
        p(f"v_lshrrev_b32 v{g}, 4, v{vLANE}\nv_and_b32 v{j}, 15, v{vLANE}")
        self.xrow_addr(TMP, g, j)
        p(f"v_lshrrev_b32 v{TMP+3}, 3, v{vLANE}\nv_and_b32 v{TMP+4}, 7, v{vLANE}\nv_lshlrev_b32 v{TMP+4}, 4, v{TMP+4}")
        p(f"v_lshl_add_u32 v{TMP+5}, v{TMP+3}, 11, v{TMP+4}")
        p(f"v_mul_u32_u24 v{TMP+3}, 6144, v{TMP+3}\nv_add_u32 v{TMP+3}, v{TMP+3}, v{TMP+4}")
        p(f"s_lshr_b32 s{sT0}, s{sRP}, 4\ns_lshl_b32 s{sT0}, s{sT0}, 2\ns_add_u32 s{sT0}, s{sT0}, s{sWAVE}\ns_mul_i32 s{sT0}, s{sT0}, {16*6144}")
        p(f"s_and_b32 s{sT1}, s{sRP}, 15\ns_lshl_b32 s{sT1}, s{sT1}, 7\ns_add_u32 s{sT0}, s{sT0}, s{sT1}")
        p(f"s_lshl_b32 s{sT1}, s{sWAVE}, 11\ns_mov_b32 s{sT3}, 0x10000")
        p(f"s_mov_b32 s{sX+2}, {hex(4*MB)}\ns_mov_b32 s{sX+3}, 0x20000\ns_mov_b32 s{sIN+2}, {hex(6*MB)}\ns_mov_b32 s{sIN+3}, 0x20000")
        p(f"s_mov_b32 s{sWS+2}, {hex(256*MB - self.wsoff)}\ns_mov_b32 s{sWS+3}, 0x20000\ns_mov_b32 s{sD}, {hex(EPOCH)}")
        p("s_waitcnt lgkmcnt(0)")
        self.stamp("start")
        p(f"s_mov_b64 s[{sX}:{sX+1}], s[{sP}:{sP+1}]\ns_mov_b64 s[{sIN}:{sIN+1}], s[{sP+2}:{sP+3}]")
        for b in range(2):
            for hf in range(2):
                p(f"buffer_load_dwordx4 {vr(XRES+8*b+4*hf,4)}, v{TMP}, {SRD(sX)}, {'s%d'%sT3 if b else 0} offen offset:{64*hf}{self.nt}")
        for part in range(3):
            for rgp in range(2):
                p(f"s_add_u32 m0, s{sT1}, {part*8192 + rgp*1024}\ns_add_u32 s{sT2}, s{sT0}, {part*2048 + rgp*8*6144}")
                p(f"buffer_load_dwordx4 v{TMP+3}, {SRD(sIN)}, s{sT2} offen{self.nt} lds", wr=["raw"])
        p(f"s_add_u32 s{sWS}, s{sP+18}, {hex(self.wsoff)}\ns_addc_u32 s{sWS+1}, s{sP+19}, 0")
        p(f"buffer_load_dword v{vT0}, off, {SRD(sWS)}, s{sD} sc1")
        p(f"s_lshr_b32 s{sT0}, s2, 3\ns_lshl_b32 s{sT0}, s{sT0}, 2\ns_add_u32 s{sT0}, s{sT0}, s{sWAVE}\ns_lshl_b32 s{sT0}, s{sT0}, 10")
        p(f"buffer_load_dwordx4 a[0:3], v{vLIN}, {SRD(sCODE)}, s{sT0} offen")
        self.srd(sDBG, sP + 16, 256)
        self.srd(sOUT, sP + 14, 4 * MB)
        p(f"s_mov_b32 s{sSRC+2}, {hex(4*MB)}\ns_mov_b32 s{sSRC+3}, 0x20000\nv_mov_b32 v{vONE}, 1")
        self.src_srd(self.XF[0])
        self.consts3()
        for i in range(4):
            p(f"v_mov_b32 v{TMP+8+i}, 0")
        p(f"v_lshlrev_b32 v{TMP+7}, 16, v{g}\nv_lshl_add_u32 v{TMP+7}, v{j}, 4, v{TMP+7}")
        p(f"s_cmp_eq_u32 s{sWAVE}, 0\ns_cselect_b32 s{sT0}, s{sID1}, s{sID2}\ns_cmp_eq_u32 s{sWAVE}, 2\ns_cselect_b32 s{sT0}, s{sIDK}, s{sT0}")
        p(f"s_lshl_b32 s{sT1}, s{sWAVE}, 18\ns_add_u32 s{sT0}, s{sT0}, s{sT1}\ns_cmp_eq_u32 s{sWAVE}, 3\ns_cselect_b32 s{sT0}, {hex(OOB)}, s{sT0}")
        p(f"buffer_store_dwordx4 {vr(TMP+8,4)}, v{TMP+7}, {SRD(sWS)}, s{sT0} offen sc1")
        if self.fine == -1:
            self.stamp("p0_iss")
        self.consts(g, j)

    def xrow_addr(self, d, g, j):
        p = self.p
        p(f"s_and_b32 s{sT0}, s{sRB}, 7\ns_lshl_b32 s{sT0}, s{sT0}, 7\ns_lshl_b32 s{sT1}, s{sWAVE}, 5\ns_add_u32 s{sT0}, s{sT0}, s{sT1}")
        p(f"s_lshl_b32 s{sT0}, s{sT0}, 1\ns_lshr_b32 s{sT1}, s{sRB}, 3\ns_add_u32 s{sT0}, s{sT0}, s{sT1}\ns_lshl_b32 s{sT0}, s{sT0}, 11")
        p(f"s_lshl_b32 s{sT1}, s{sCB}, 7\ns_add_u32 s{sT0}, s{sT0}, s{sT1}")
        p(f"v_lshl_add_u32 v{d}, v{j}, 12, s{sT0}\nv_lshl_add_u32 v{d}, v{g}, 4, v{d}")

    def consts(self, g, j):
        p = self.p
        t, u = TMP + 12, TMP + 13
        for i in range(4):
            p(f"v_mov_b32 v{ONES+i}, 0x3f803f80")
        p(f"s_mov_b32 s{sM1}, 0xaaaaaaaa\ns_mov_b32 s{sM1+1}, 0xaaaaaaaa\ns_mov_b32 s{sM2}, 0xcccccccc\ns_mov_b32 s{sM2+1}, 0xcccccccc")
        p(f"s_lshl_b32 s{sT0}, s{sRB}, 1\ns_lshr_b32 s{sT1}, s{sWAVE}, 1\ns_add_u32 s{sT0}, s{sT0}, s{sT1}\ns_lshl_b32 s{sT0}, s{sT0}, 17")
        p(f"s_and_b32 s{sT1}, s{sWAVE}, 1\ns_lshl_b32 s{sT1}, s{sT1}, 11\ns_add_u32 s{sT0}, s{sT0}, s{sT1}\nv_add_u32 v{vA2}, s{sT0}, v{vLIN}")
        p(f"s_lshl_b32 s{sT2}, s{sRB}, 2\ns_add_u32 s{sT2}, s{sT2}, s{sWAVE}\ns_lshl_b32 s{sT2}, s{sT2}, 12\ns_lshl_b32 s{sT3}, s{sCB}, 7\ns_add_u32 s{sT2}, s{sT2}, s{sT3}")
        p(f"v_lshrrev_b32 v{t}, 2, v{j}\nv_cmp_eq_u32 vcc, v{t}, v{g}\nv_and_b32 v{t}, 7, v{j}\nv_lshl_add_u32 v{t}, v{t}, 4, s{sT2}\nv_and_b32 v{u}, 8, v{j}\nv_add_u32 v{t}, v{t}, v{u}\nv_cndmask_b32 v{vSO}, 2.0, v{t}, vcc")
        p(f"v_lshlrev_b32 v{t}, 4, v{g}\nv_lshl_add_u32 v{t}, v{j}, 6, v{t}\nv_cmp_gt_u32 vcc, 2, v{j}\nv_cndmask_b32 v{vDUP}, 2.0, v{t}, vcc")

    def consts2(self):
        p = self.p
        g, j = TMP + 1, TMP + 2
        t, u = TMP + 12, TMP + 13
        p(f"s_mov_b32 s{sZ0}, 0x11111111\ns_mov_b32 s{sZ0+1}, 0x11111111\ns_mov_b32 s{sZ1}, 0x22222222\ns_mov_b32 s{sZ1+1}, 0x22222222")
        p(f"s_mul_i32 s{sWB}, s{sH}, {192*1024}\ns_and_b32 s{sT0}, s{sWAVE}, 1\ns_mul_i32 s{sT0}, s{sT0}, 3072\ns_add_u32 s{sWB}, s{sWB}, s{sT0}\ns_add_u32 s{sWB}, s{sWB}, {hex(WP[0])}")
        p(f"s_lshl_b32 s{sWOB}, s{sCB}, 17\ns_add_u32 s{sWOB}, s{sWOB}, {hex(WOP[0])}")
        p(f"s_mul_i32 s{sHB}, s{sWAVE}, 6144")
        for i in range(4):
            p(f"v_accvgpr_write_b32 {reg(POIS+i)}, -1")
        p(f"s_lshl_b32 s{sT0}, s{sRG}, 2\ns_add_u32 s{sT0}, s{sT0}, s{sWAVE}\ns_lshl_b32 s{sT1}, s{sT0}, 17\nv_add_u32 v{vA1}, s{sT1}, v{vLIN}")
        p(f"s_lshl_b32 s{sSTB}, s{sT0}, 13")
        p(f"s_and_b32 s{sT2}, s{sRG}, 3\ns_cmp_eq_u32 s{sT2}, 0\ns_cselect_b32 s{sT2}, 0, {hex(128*1024-3072)}\ns_cselect_b32 s{sT3}, 0, 2048\ns_cselect_b32 s{sEXP}, 32, 48")
        p(f"s_lshl_b32 s{sT1}, s{sRG}, 19\ns_sub_u32 s{sT1}, s{sT1}, s{sT2}\nv_add_u32 v{vH1}, s{sT1}, v{vLIN}")
        p(f"v_cmp_le_u32 vcc, 8, v{j}\nv_cndmask_b32 v{vH1}, 2.0, v{vH1}, vcc")
        p(f"s_lshl_b32 s{sT1}, s{sRG}, 15\ns_sub_u32 s{sSTH}, s{sT1}, s{sT3}")
        p(f"s_cmp_eq_u32 s{sWAVE}, 1\ns_cselect_b32 vcc_lo, -1, 0\ns_mov_b32 vcc_hi, 0\nv_lshlrev_b32 v{t}, 8, v{vLANE}\nv_cndmask_b32 v{vSM}, 2.0, v{t}, vcc")

        def slot(d, s_, g_):
            p(f"v_and_b32 v{t}, 1, v{g_}\nv_lshl_add_u32 v{t}, v{t}, 3, v{s_}\nv_and_b32 v{t}, 15, v{t}")
            p(f"v_lshrrev_b32 v{u}, 1, v{g_}\nv_lshl_add_u32 v{t}, v{u}, 4, v{t}")
            p(f"v_lshrrev_b32 v{u}, 3, v{s_}\nv_lshl_add_u32 v{t}, v{u}, 5, v{t}\nv_lshlrev_b32 v{d}, 3, v{t}")
        slot(vTW, j, g)
        p(f"v_lshrrev_b32 v{TMP+14}, 2, v{vLANE}\nv_and_b32 v{TMP+15}, 3, v{vLANE}")
        slot(vTR, TMP + 14, TMP + 15)
        p(f"s_and_b32 s{sT0}, s{sWAVE}, 1\ns_lshl_b32 s{sT1}, s{sT0}, 3\ns_add_u32 s{sT1}, s{sT1}, {LK}\ns_lshl_b32 s{sT0}, s{sT0}, 9")
        p(f"v_add_u32 v{t}, s{sT1}, v{vLIN}\nv_add_u32 v{u}, s{sT0}, v{vTW}")
        p(f"s_cmp_lt_u32 s{sWAVE}, 2\ns_cselect_b64 vcc, -1, 0\nv_cndmask_b32 v{vHW}, v{u}, v{t}, vcc")
        d, big, gi = TMP + 14, TMP + 15, TMP + 7
        p(f"v_lshlrev_b32 v{gi}, 2, v{g}\nv_sub_u32 v{gi}, v{gi}, v{j}\nv_mov_b32 v{big}, {fhex(-1e30)}")
        for r in range(4):
            half = "0xffff0000" if r & 1 else "0xffff"
            for (bias, mask, isC) in ((BIASC, MASKC, True), (BIASP, MASKP, False)):
                if isC:
                    p(f"v_add_u32 v{d}, {r+7}, v{gi}\nv_cmp_gt_u32 vcc, 8, v{d}")
                else:
                    p(f"v_add_u32 v{d}, {r}, v{gi}\nv_cmp_le_i32 vcc, 9, v{d}")
                p(f"v_mov_b32 v{t}, {half}\nv_cndmask_b32 v{bias+r}, v{big}, 0, vcc\nv_cndmask_b32 v{t}, 0, v{t}, vcc")
                if r & 1:
                    p(f"v_or_b32 v{mask+r//2}, v{mask+r//2}, v{t}")
                else:
                    p(f"v_mov_b32 v{mask+r//2}, v{t}")
        p(f"s_and_b32 s{sT0}, s{sRG}, 3\ns_or_b32 s{sT0}, s{sT0}, s{sWAVE}\ns_cmp_eq_u32 s{sT0}, 0\ns_cselect_b64 vcc, -1, 0")
        for r in range(4):
            p(f"v_cndmask_b32 v{BIASP0+r}, v{BIASP+r}, v{big}, vcc")
        for r in range(2):
            p(f"v_cndmask_b32 v{MASKP0+r}, v{MASKP+r}, 0, vcc")

    def consts3(self):
        p = self.p
        p(f"s_mov_b32 s{sM8}, 0xff\ns_mov_b32 s{sM8+1}, 0\ns_and_b32 s{sI4}, s{sRG}, 3")
        p(f"s_lshl_b32 s{sID1}, s{sRB}, 4\ns_add_u32 s{sID1}, s{sID1}, s{sCB}\ns_lshl_b32 s{sID1}, s{sID1}, 8")
        p(f"s_lshl_b32 s{sID2}, s{sRG}, 5\ns_add_u32 s{sID2}, s{sID2}, s{sH}\ns_lshl_b32 s{sID2}, s{sID2}, 8")
        p(f"s_lshl_b32 s{sGKB}, s{sH}, 11\ns_lshl_b32 s{sIDK}, s{sRG}, 8\ns_add_u32 s{sIDK}, s{sIDK}, s{sGKB}")
        p(f"s_lshl_b32 s{sG1B}, s{sRG}, 13\ns_lshr_b32 s{sG2B}, s{sRB}, 1\ns_lshl_b32 s{sG2B}, s{sG2B}, 13")
        p(f"s_add_u32 s{sG2H}, s{sG2B}, 8192\ns_bitcmp1_b32 s{sRB}, 0\ns_cselect_b32 s{sG2H}, s{sG2H}, {hex(OOB)}")
        p(f"s_and_b32 s{sT0}, s{sRB}, 7\ns_cmp_eq_u32 s{sT0}, 7\ns_cselect_b32 s{sG2H}, {hex(OOB)}, s{sG2H}")

    def repack_addr(self):
        p = self.p
        a, a2, a3, a4 = TMP + 16, TMP + 17, TMP + 18, TMP + 19
        p(f"v_lshrrev_b32 v{a}, 4, v{vLANE}\nv_lshlrev_b32 v{a}, 10, v{a}\nv_bfe_u32 v{a2}, v{vLANE}, 2, 2\nv_lshl_add_u32 v{a}, v{a2}, 7, v{a}")
        p(f"v_and_b32 v{a4}, 3, v{vLANE}\nv_lshl_add_u32 v{a}, v{a4}, 3, v{a}")
        p(f"s_lshr_b32 s{sT0}, s{sWAVE}, 1\ns_lshl_b32 s{sT0}, s{sT0}, 6\ns_and_b32 s{sT1}, s{sWAVE}, 1")
        p(f"s_mul_i32 s{sT2}, s{sT1}, 8224\ns_add_u32 s{sT2}, s{sT2}, s{sT0}\ns_mul_i32 s{sT3}, s{sT1}, 16352\ns_add_u32 s{sT3}, s{sT3}, s{sT0}")
        p(f"v_add_u32 v{a2}, s{sT3}, v{a}\nv_add_u32 v{a}, s{sT2}, v{a}")
        p(f"s_and_b32 s{sT2}, s{sRP}, 15\ns_lshl_b32 s{sT2}, s{sT2}, 1\ns_lshr_b32 s{sT0}, s{sWAVE}, 1\ns_add_u32 s{sT2}, s{sT2}, s{sT0}")
        p(f"s_lshr_b32 s{sT0}, s{sRP}, 4")
        p(f"s_mul_i32 s{sR}, s{sT2}, {192*1024}\ns_mul_i32 s{sD}, s{sT0}, 12288\ns_add_u32 s{sR}, s{sR}, s{sD}")
        p(f"s_mul_i32 s{sD}, s{sT1}, 3072\ns_add_u32 s{sR}, s{sR}, s{sD}\ns_add_u32 s{sR}, s{sR}, {hex(WP[0])}\ns_add_u32 s{sR+1}, s{sR}, 6144")
        p(f"s_mul_i32 s{sT2}, s{sT2}, 6\ns_mul_i32 s{sT1}, s{sT1}, 3\ns_add_u32 s{sT2}, s{sT2}, s{sT1}\ns_lshl_b32 s{sT2}, s{sT2}, 11")
        p(f"s_lshl_b32 s{sT0}, s{sT0}, 7\ns_add_u32 s{sT2}, s{sT2}, s{sT0}\ns_add_u32 s{sR+2}, s{sT2}, {hex(CS[0])}\ns_add_u32 s{sR+3}, s{sR+2}, 4096")

    def repack_addr2(self):
        p = self.p
        a, a2, a3, a4 = TMP + 16, TMP + 17, TMP + 18, TMP + 19
        p(f"v_add_u32 v{a}, {S_B}, v{a}\nv_add_u32 v{a2}, {S_B}, v{a2}")
        for i in range(2):
            p(f"s_add_u32 s{sR+i}, s{sR+i}, {hex(WP[1]-WP[0])}\ns_add_u32 s{sR+2+i}, s{sR+2+i}, {hex(CS[1]-CS[0])}")
        p(f"v_lshrrev_b32 v{vT0}, 2, v{vLANE}\nv_lshlrev_b32 v{a3}, 7, v{vT0}\nv_lshl_add_u32 v{a3}, v{a4}, 4, v{a3}")
        p(f"s_lshr_b32 s{sT0}, s{sWAVE}, 1\ns_lshl_b32 s{sT0}, s{sT0}, 12\ns_and_b32 s{sT1}, s{sWAVE}, 1\ns_lshl_b32 s{sT1}, s{sT1}, 6\ns_add_u32 s{sT0}, s{sT0}, s{sT1}")
        p(f"s_add_u32 s{sT0}, s{sT0}, {S_AO}\nv_add_u32 v{a3}, s{sT0}, v{a3}")
        p(f"s_and_b32 s{sT0}, s{sRP}, 15\ns_lshl_b32 s{sT0}, s{sT0}, 17\ns_lshr_b32 s{sT1}, s{sRP}, 4\ns_lshl_b32 s{sT1}, s{sT1}, 13\ns_add_u32 s{sT0}, s{sT0}, s{sT1}")
        p(f"s_lshl_b32 s{sT1}, s{sWAVE}, 11\ns_add_u32 s{sT0}, s{sT0}, s{sT1}\ns_add_u32 s{sR+4}, s{sT0}, {hex(WOP[0])}\ns_add_u32 s{sR+5}, s{sT0}, {hex(WOP[1])}")
        p(f"v_lshlrev_b32 v{vT0}, 6, v{vT0}\nv_lshl_add_u32 v{a4}, v{a4}, 3, v{vT0}\nv_add_u32 v{a4}, {S_PHI}, v{a4}")

    def repack_wqkv(self, tok, CL=LAND):
        a, a2 = TMP + 16, TMP + 17
        F = RPK
        offs = [(a, 0), (a2, 32), (a, 8192)]
        rd, st = [], []
        for i in range(3):
            for tt in range(2):
                for pp in range(2):
                    rd.append(f"ds_read_b64_tr_b16 {reg(F+(i*2+tt)*4+2*pp,2)}, v{offs[i][0]} offset:{offs[i][1] + (32*tt+4*pp)*128}")
        for i in range(3):
            for tt in range(2):
                st.append(Inst(f"buffer_store_dwordx4 {reg(F+(i*2+tt)*4,4)}, v{vLIN}, {SRD(sWS)}, s{sR+tt} offen offset:{i*1024} sc1", xwr=[tok]))
        mm = [mfma(CL + 4 * i, F + (i * 2 + tt) * 4, ONES, CL + 4 * i if tt else None) for tt in range(2) for i in range(3)]
        s2 = [Inst(f"buffer_store_dwordx4 {vr(CL+4*i,4)}, v{vDUP}, {SRD(sWS)}, s{sR+2+i//2} offen offset:{(i&1)*2048} sc1", xwr=[tok]) for i in range(3)]
        return rd, mm, st, s2

    def repack_rest(self):
        a3, a4 = TMP + 18, TMP + 19
        rd, st = [], []
        for t in range(2):
            F = RPK + 24 + 8 * t
            for i in range(2):
                for pp in range(2):
                    rd.append(f"ds_read_b64_tr_b16 {reg(F+4*i+2*pp,2)}, v{a3} offset:{t*8192 + 8*i + pp*2048}")
                st.append(Inst(f"buffer_store_dwordx4 {reg(F+4*i,4)}, v{vLIN}, {SRD(sWS)}, s{sR+4+t} offen offset:{i*1024} sc1", xwr=["rpk2" if t else "rpk"]))
        for fb in range(2):
            for pp in range(2):
                rd.append(f"ds_read_b64_tr_b16 {reg(WPHI+4*fb+2*pp,2)}, v{a4} offset:{fb*32 + pp*1024}")
        return rd, st

    def raw2_issue(self):
        p = self.p
        nt = self.nt
        p(f"s_mov_b64 s[{sIN}:{sIN+1}], s[{sP+4}:{sP+5}]\ns_mov_b32 s{sIN+2}, {hex(2*MB)}")
        p(f"s_lshr_b32 s{sT0}, s{sC0}, 4\ns_lshl_b32 s{sT0}, s{sT0}, 2\ns_add_u32 s{sT0}, s{sT0}, s{sWAVE}\ns_and_b32 s{sT1}, s{sC0}, 15\ns_lshl_b32 s{sT1}, s{sT1}, 7")
        p(f"s_lshl_b32 s{sT2}, s{sT0}, 15\ns_add_u32 s{sT2}, s{sT2}, s{sT1}\ns_add_u32 s{sT3}, s{sT2}, {8*2048}\ns_lshl_b32 s{sD}, s{sWAVE}, 11")
        for t in range(2):
            if t:
                p(f"s_mov_b64 s[{sIN}:{sIN+1}], s[{sP+12}:{sP+13}]")
            for r in range(2):
                p(f"s_add_u32 m0, s{sD}, {S_AO + t*8192 + r*1024}")
                p(f"buffer_load_dwordx4 v{TMP+5}, {SRD(sIN)}, s{sT2+r} offen{nt} lds")
        p(f"s_mov_b64 s[{sIN}:{sIN+1}], s[{sP+8}:{sP+9}]\ns_mov_b32 s{sIN+2}, {hex(6*MB)}")
        p(f"s_mul_i32 s{sT0}, s{sT0}, {16*6144}\ns_add_u32 s{sT0}, s{sT0}, s{sT1}")
        for part in range(3):
            for r in range(2):
                p(f"s_add_u32 m0, s{sD}, {S_B + part*8192 + r*1024}\ns_add_u32 s{sT2}, s{sT0}, {part*2048 + r*8*6144}")
                p(f"buffer_load_dwordx4 v{TMP+3}, {SRD(sIN)}, s{sT2} offen{nt} lds")
        p(f"s_mov_b64 s[{sIN}:{sIN+1}], s[{sP+10}:{sP+11}]\ns_mov_b32 s{sIN+2}, 0x10000")
        p(f"s_and_b32 s{sT0}, s{sWAVE}, 1\ns_lshl_b32 s{sT0}, s{sT0}, 10\ns_add_u32 m0, s{sT0}, {S_PHI}\ns_lshl_b32 s{sT1}, s{sH}, 11\ns_add_u32 s{sT0}, s{sT0}, s{sT1}")
        p(f"buffer_load_dwordx4 v{vLIN}, {SRD(sIN)}, s{sT0} offen lds", wr=["raw2"])

    def phase0(self):
        p = self.p
        self.setup()
        self.repack_addr()
        self.consts2()
        if self.fine == -1:
            self.stamp("p0_c2")
            p.waitfor(rr(XRES, 16))
            self.stamp("p0_x")
        self.k2_store(0)
        if self.fine == -1:
            self.stamp("p0_xst")
        p.waitfor(["raw", TMP + 6])
        if self.fine == -1:
            self.stamp("p0_rawown")
        p("s_barrier")
        self.stamp("p0_raw")
        rd, mm, st, s2 = self.repack_wqkv("crit")
        self.emit(rd + mm + st + s2)
        tag = TMP + 10
        p(f"s_mov_b32 s{sT0}, 0x9e3779b1\nv_mul_lo_u32 v{tag}, v{vT0}, s{sT0}\nv_add_u32 v{tag}, 0x7f4a7c15, v{tag}\nv_accvgpr_write_b32 a242, v{tag}")
        p(f"s_and_b32 s{sT0}, s{sRB}, 1\ns_lshl_b32 s{sT0}, s{sT0}, 4\ns_add_u32 s{sT0}, s{sT0}, s{sCB}\ns_lshl_b32 s{sT0}, s{sT0}, 2")
        p(f"s_add_u32 s{sSGA}, s{sG2B}, s{sT0}\ns_add_u32 s{sSGA}, s{sSGA}, {hex(I_G1*65536)}")
        p(f"s_lshl_b32 s{sT0}, s{sCB}, 2\ns_add_u32 s{sSGB}, s{sG2H}, s{sT0}\ns_add_u32 s{sSGB}, s{sSGB}, {hex(I_G1*65536 + 128)}")
        p(f"s_and_b32 s{sSGC}, s{sRP}, 15\ns_lshl_b32 s{sSGC}, s{sSGC}, 9\ns_lshr_b32 s{sT0}, s{sRP}, 4\ns_lshl_b32 s{sT0}, s{sT0}, 2\ns_add_u32 s{sSGC}, s{sSGC}, s{sT0}")
        p(f"s_add_u32 s{sSGC}, s{sSGC}, {hex(I_G1*65536 + 192)}")
        p(f"v_lshrrev_b32 v{TMP+8}, 1, v{vLANE}\nv_lshlrev_b32 v{TMP+8}, 13, v{TMP+8}\nv_and_b32 v{TMP+9}, 1, v{vLANE}\nv_lshl_add_u32 v{TMP+8}, v{TMP+9}, 8, v{TMP+8}")
        p(f"s_mov_b32 vcc_lo, 0xffff\ns_mov_b32 vcc_hi, 0\nv_cndmask_b32 v{TMP+8}, 2.0, v{TMP+8}, vcc\nv_lshlrev_b32 v{TMP+9}, 2, v{vLANE}")
        self.repack_addr2()
        p(f"s_mov_b32 s{sC0}, s{sRP}")
        p(f"s_and_b32 s{sT0}, s2, 31\ns_lshl_b32 s{sT0}, s{sT0}, 2\nv_mov_b32 v{vG2S}, s{sT0}\nv_cmp_eq_u32 vcc, 0, v{vSM}\nv_cndmask_b32 v{vG2S}, 2.0, v{vG2S}, vcc")
        p(f"v_and_b32 v{vG2L}, 31, v{vLANE}\nv_lshlrev_b32 v{vG2L}, 2, v{vG2L}")
        if self.fine == -1:
            self.stamp("p0_wst")
        p("s_waitcnt vmcnt(0)")
        if self.fine == -1:
            self.stamp("p0_ackown")
        p("s_barrier")
        self.stamp("p0_ack")
        E1, Lp, E = p.label("Lg1s"), p.label("Lg1p"), p.label("Lg1e")
        p(f"s_cmp_lg_u32 s{sWAVE}, 1\ns_cbranch_scc1 {E1}")
        for sg, v in ((sSGA, vSM), (sSGB, vSM), (sSGC, TMP + 8)):
            p(f"buffer_store_dword v{tag}, v{v}, {SRD(sWS)}, s{sg} offen sc1")
        p(f"{E1}:\ns_cmp_lg_u32 s{sWAVE}, 0\ns_cbranch_scc1 {E}")
        p(f"s_cmp_eq_u32 s{sEXP}, 32\ns_cselect_b32 s{sT3}, 0xffff0000, -1\ns_mov_b32 s{sT2}, -1\ns_add_u32 s{sT0}, s{sID2}, {hex(I_G1*65536)}\ns_mov_b32 s{sT1}, 0")
        p(f"{Lp}:\nv_mov_b32 v{vT0}, 0\nbuffer_atomic_add v{vT0}, v{TMP+9}, {SRD(sWS)}, s{sT0} offen sc0 sc1\ns_add_u32 s{sT1}, s{sT1}, 1\ns_waitcnt vmcnt(0)")
        p(f"v_cmp_ne_u32 vcc, v{vT0}, v{tag}\ns_and_b64 vcc, vcc, s[{sT2}:{sT3}]\ns_cbranch_scc0 {E}")
        p(f"s_cmp_lt_u32 s{sT1}, 0x100000\ns_cbranch_scc1 {Lp}\n{E}:")
        p("s_barrier")
        self.stamp("G1")

    def k2_store(self, l):
        p = self.p
        p(f"s_lshl_b32 s{sT0}, s{sCB}, 13\ns_add_u32 s{sT0}, s{sT0}, {hex(self.XF[l] or 0)}\ns_add_u32 s{sT1}, s{sT0}, 4096\ns_mov_b32 s{sT2}, {hex(ST[l])}")
        for hf in range(2):
            for b in range(2):
                X = XRES + 8 * b + 4 * hf
                S, G = LAND + 8 * b, LAND + 8 * b + 4
                p(mfma(G, X, X, G if hf else None))
                p(mfma(S, ONES, X, S if hf else None))
                p(f"buffer_store_dwordx4 {vr(X,4)}, v{vA2}, {SRD(sOUT if self.XF[l] is None else sWS)}, s{sT1 if hf else sT0} offen offset:{b*1024} sc1", wr=["crit"])
        for b in range(2):
            S, G = LAND + 8 * b, LAND + 8 * b + 4
            p(f"v_cndmask_b32 v{G}, v{G}, v{G+1}, s[{sM1}:{sM1+1}]\nv_cndmask_b32 v{G+2}, v{G+2}, v{G+3}, s[{sM1}:{sM1+1}]")
            p(f"v_cndmask_b32 v{S+1}, v{G}, v{G+2}, s[{sM2}:{sM2+1}]")
            p(f"buffer_store_dwordx2 {vr(S,2)}, v{vSO}, {SRD(sWS)}, s{sT2} offen offset:{b*2048} sc1", wr=["crit"])

    def allred2(self, a, b, t, op):
        return L(f"v_permlane32_swap_b32 v{a}, v{b}\n{op} v{a}, v{a}, v{b}\nv_mov_b32 v{t}, v{a}\n"
                 f"v_permlane16_swap_b32 v{a}, v{t}\n{op} v{a}, v{a}, v{t}\nv_mov_b32 v{t}, v{a}\nv_permlane32_swap_b32 v{a}, v{t}")

    def k1_main(self, l):
        p = self.p
        t = l & 1
        isA = t == 0
        D = self.D
        NA = 5 if isA else 4
        NB = 7 if isA else 6
        npq = 4 if l == 0 else self.npq
        last = l == self.nlayers - 1
        ring = lambda s, j: RING + (s % D) * 16 + 4 * j
        bfr = lambda s, cb: BFR + (s % 2) * 32 + 4 * cb
        assert D * 16 <= 64
        halo = lambda s: [] if (not isA or s >= 28) else ([(s // 4, s % 4)] + ([(7, s % 4)] if s >= 24 else []))
        ha = lambda m: HA + 4 * (m % 3)

        def aload(s):
            g = [f"buffer_load_dwordx4 {reg(ring(s,j),4)}, v{vA1}, {SRD(sSRC)}, s{sK} offen offset:{j*1024} sc1" for j in range(4)]
            return g + self.knext(self.pi1, s + 1)

        def hload(m):
            return ([f"s_add_u32 s{sKH}, s{sWAVE}, {4*m}"] + self.kmap(self.pi1, sROT1, sKH, sC0) +
                    [f"s_lshl_b32 s{sKH}, s{sKH}, 12", f"buffer_load_dwordx4 {reg(ha(m),4)}, v{vH1}, {SRD(sSRC)}, s{sKH} offen sc1"])

        def bread(s):
            o = (s % 8) * 6144
            g = [f"ds_read_b128 {reg(bfr(s,cb),4)}, v{vBB} offset:{o + cb*1024}" for cb in range(6)]
            for i, (m, b) in enumerate(halo(s)):
                g.append(f"ds_read_b128 {reg(bfr(s,6+i),4)}, v{vHB} offset:{(4*m % 8)*6144 + (2+b)*1024}")
            if s % 8 == 0:
                g = [f"v_add_u32 v{vBB}, {((s // 8) % 3) * REG}, v{vLIN}"] + ([f"v_add_u32 v{vHB}, s{sHB}, v{vBB}"] if isA else []) + g
            return g

        order = [(cb, rb if cb % 2 == 0 else 3 - rb) for cb in range(6) for rb in range(4)]
        steps = []
        for s in range(32):
            mf = [mfma(acc(rb, cb), bfr(s, cb), ring(s, rb), acc(rb, cb) if s else None) for cb, rb in order]
            for i, (m, b) in enumerate(halo(s)):
                mf.append(mfma(ACCH16 + 4 * b, bfr(s, 6 + i), ha(m), ACCH16 + 4 * b if m else None))
            steps.append(mf)
        W = Weave(steps)
        n = 24
        for s in range(32):
            need = rr(ring(s, 0), 16) + rr(bfr(s, 0), 4 * (6 + len(halo(s))))
            for m, b in halo(s):
                need += rr(ha(m), 4)
            pre = []
            if s % 8 == 7:
                need += [("W", s // 8 + 1)] + (["csw", "rpk"] if s == 15 else []) + (["pois", "hw"] if s == 31 else [])
                if l == 0 and s == 7:
                    need += rr(RPK, 40) + rr(WPHI, 8)
                W.load[W.g(s) - 1] += 1
            if l == 0 and s == 3:
                need += ["raw2"]
            pre.append(waitfor_inst(need))
            if s % 8 == 7 or (l == 0 and s == 3):
                pre.append("s_barrier")
            if s == 0:
                pre.append(lambda: self.stamp(f"L{l}_k1first"))
            if self.fine == l and s % 4 == 3:
                pre.append(lambda s=s: self.stamp(f"L{l}_k1s{s}"))
            W.pre[s] = pre
        FX = 26
        LCS = 3 * REG
        ex = []
        stl = [f"s_add_u32 s{sS0}, s{sSTB}, {hex(ST[l])}"]
        for b in range(NA):
            if b == 2:
                stl.append(f"s_add_u32 s{sS0}, s{sS0}, 4096")
            if b == 4:
                stl.append(f"s_add_u32 s{sS0}, s{sSTH}, {hex(ST[l])}")
            for hf in range(2):
                stl.append(f"buffer_load_dwordx4 {vr(LAND+8*b+4*hf,4)}, v{vLIN}, {SRD(sWS)}, s{sS0} offen offset:{(b&1)*2048 + hf*1024} sc1")
        if "nostl" in self.dbg:
            stl = []
        po = []
        st4 = lambda v, off, c="": Inst(f"buffer_store_dwordx4 {reg(POIS,4)}, v{v}, {SRD(sWS)}, s{sPO} offen offset:{off} sc1{c}", xwr=["pois"])
        if self.spec1:
            po = [f"s_lshl_b32 s{sPO}, s{sH}, 12", f"s_add_u32 s{sPO}, s{sPO}, {hex(self.OF[l])}"]
            po += [st4(vA1, rb * 1024) for rb in range(4)]
        if self.speck and not isA:
            po += [f"s_lshl_b32 s{sPO}, s{sH}, 2", f"s_add_u32 s{sPO}, s{sPO}, s{sWAVE}", f"s_lshl_b32 s{sPO}, s{sPO}, 3", f"s_add_u32 s{sPO}, s{sPO}, s{sRG}",
                   f"s_lshl_b32 s{sPO}, s{sPO}, 7", f"s_add_u32 s{sPO}, s{sPO}, {hex(KVZ[l//2])}", st4(vDUP, 0, ""),
                   f"s_sub_u32 s{sPO}, s{sPO}, {hex(KVZ[l//2])}", f"s_lshl_b32 s{sPO}, s{sPO}, 4", f"s_add_u32 s{sPO}, s{sPO}, {hex(self.KVP[l//2])}",
                   st4(vLIN, 0), st4(vLIN, 1024)]
        csl = []
        if l < 2:
            csl = L(f"v_and_b32 v{TMP}, 15, v{vLANE}\nv_lshlrev_b32 v{TMP}, 7, v{TMP}\nv_lshrrev_b32 v{TMP+1}, 4, v{vLANE}\nv_lshlrev_b32 v{TMP+1}, 4, v{TMP+1}\nv_add_u32 v{TMP}, v{TMP+1}, v{TMP}")
            csl += [f"s_mul_i32 s{sT2}, s{sH}, 12288", f"s_add_u32 s{sT2}, s{sT2}, {hex(CS[t])}", f"s_add_u32 s{sT3}, s{sWAVE}, 4", f"s_min_u32 s{sT3}, s{sT3}, 5",
                    f"s_lshl_b32 s{sT0}, s{sWAVE}, 11", f"s_add_u32 s{sT0}, s{sT0}, s{sT2}", f"s_lshl_b32 s{sT1}, s{sT3}, 11", f"s_add_u32 s{sT1}, s{sT1}, s{sT2}"]
            csl += [f"buffer_load_dwordx4 {vr(CSUM+4*i,4)}, v{TMP}, {SRD(sWS)}, s{sT0+i} offen sc1" for i in range(2)]
        woq = ([1, 2, 3, 4, 5, 6] if isA else [1, 2, 3, 7, 4, 5, 6])[:self.wo_loop[t]]
        if l == 0:
            woq = []
        self.wo_left = [q for q in range(8) if q not in woq]
        dma = lambda c: [] if ("nodma" in self.dbg and l) else self.w_dma(t, max(4 * c, npq), 4 * c + 4)
        ex.append(("w1", 0, 5, dma(1)))
        ex.append(("cs", 0, 9, csl))
        ex.append(("w2", 7 if l == 0 else 0, 13, dma(2)))
        ex.append(("stats", 0, 18, stl))
        ex.append(("w3", 7, 21, dma(3)))
        if l == 0:
            rd, mm, st, s2 = self.repack_wqkv("rpk2", TMP + 10 - 6)
            rd2, st2 = self.repack_rest()
            ex.append(("!rpk", 6, 12, st2[:2]))
            ex.append(("!g2", 15, 18, [f"buffer_atomic_add v{vONE}, v{vG2S}, {SRD(sDBG)}, 0 offen sc1"]))
            ex.append(("!g2l", 26, 28, [f"buffer_load_dword v{vT0}, v{vG2L}, {SRD(sDBG)}, 0 offen sc1"]))
            ex.append(("rpk2", 22, 31, s2 + st2[2:] + st))
        ex.append(("pois", 0, 27, po))
        if isA:
            for m in range(1, 8):
                ex.append((f"!h{m}", min(4 * m - 4, 20) + (1 if m == 7 else 0), 40, hload(m)))
        for q in woq:
            ex.append((f"wo{q}", 15 if q in (1, 2, 3) else 23, 31, self.wo_dma(t, q)))
        if "nocpf" not in self.dbg:
            ex.append(("!cpf", 21, 26, [f"s_lshr_b32 s{sS1}, s2, 3", f"s_lshl_b32 s{sS1}, s{sS1}, 10", f"s_add_u32 s{sS1}, s{sS1}, (L_cpf{l} - {KNAME} + 2048)",
                                       f"buffer_load_dwordx4 {reg(DUMMY,4)}, v{vLIN}, {SRD(sCODE)}, s{sS1} offen"]))
        ex.sort(key=lambda e: e[2])
        rep = W.vmem_plan([aload(s + D - 1) if s + D - 1 < 32 else [] for s in range(32)], ex, minrate=self.rate)
        self.info.append(f"L{l} n={n} " + rep)
        for s in range(31):
            W.stream(W.g(s), W.g(s, n - 9), bread(s + 1), hard=W.g(s, -2))
        if l == 0:
            W.stream(W.g(3), W.g(6, -9), rd2 + rd, hard=W.g(6, -3))
            W.stream(W.g(8), W.g(8, -1), mm)
        if l < 2:
            red = [f"v_add_f32_dpp v{CSUM+i}, v{CSUM+i}, v{CSUM+i} row_ror:{sh} row_mask:0xf bank_mask:0xf" for sh in (8, 4, 2, 1) for i in range(8)]
            red += [f"v_add_u32 v{TMP+1}, {LCS}, v{TMP+1}", f"s_lshl_b32 s{sT0}, s{sWAVE}, 6", f"s_lshl_b32 s{sT1}, s{sT3}, 6",
                    f"v_add_u32 v{TMP}, s{sT0}, v{TMP+1}", f"v_add_u32 v{TMP+3}, s{sT1}, v{TMP+1}"]
            c = W.stream(W.g(12), W.g(13, 10), red, hard=W.g(13, -1))
            W.stream(W.g(14), W.g(14), [Inst(f"ds_write_b128 v{TMP}, {vr(CSUM,4)}", xwr=["csw"]), Inst(f"ds_write_b128 v{TMP+3}, {vr(CSUM+4,4)}", xwr=["csw"])], hard=W.g(14, -1))
            rdc = [f"ds_read_b128 {vr(CSUM+4*cb,4)}, v{TMP+1} offset:{64*cb}" for cb in range(6)]
            if isA:
                rdc.append(f"ds_read_b128 {vr(CSUM+24,4)}, v{TMP} offset:128")
            W.stream(W.g(15), W.g(17, -9), rdc, hard=W.g(18, -9))
            W.stream(W.g(19), W.g(21, -1), [f"v_accvgpr_write_b32 {reg(PARK[t]+i)}, v{CSUM+i}" for i in range(4 * NB)])
        else:
            W.stream(W.g(4), W.g(10, -1), [f"v_accvgpr_read_b32 v{CSUM+i}, {reg(PARK[t]+i)}" for i in range(4 * NB)])
        tiles = [(acc(rb, cb), CSUM + 4 * cb, STAT + 2 * rb) for cb, rb in order]
        for r in range(0 if "nofix" in self.dbg else 4):
            for i, (a, cs, st) in enumerate(tiles):
                g0 = W.g(FX + r, i) + 9
                W.stream(g0, g0, [f"v_fmac_f32 v{a+r}, v{cs+r}, v{st}"], hard=g0 + n - 13)
        if isA:
            hw, hr = TMP + 2, TMP + 3
            W.stream(W.g(27), W.g(27), [f"s_lshl_b32 s{sC0}, s{sWAVE}, 12", f"s_add_u32 s{sC0}, s{sC0}, {LCS}", f"v_add_u32 v{hw}, s{sC0}, v{vLIN}",
                                        f"s_lshl_b32 s{sC0}, s{sWAVE}, 10", f"s_add_u32 s{sC0}, s{sC0}, {LCS}", f"v_add_u32 v{hr}, s{sC0}, v{vLIN}"], hard=W.g(27, -1))
            W.stream(W.g(28, 10), W.g(30, 10), [Inst(f"ds_write_b128 v{hw}, {reg(ACCH16+4*b,4)} offset:{b*1024}", xwr=["hw"]) for b in range(4)], hard=W.g(30, -4))
            W.stream(W.g(31), W.g(31, 8), [f"ds_read_b128 {vr(LAND+4*w_,4)}, v{hr} offset:{w_*4096}" for w_ in range(4)])
        chains = []
        for b in range(NA):
            Lb = LAND + 8 * b
            nm, rs = STAT + 2 * b, STAT + 2 * b + 1
            c = [f"v_add_f32 v{Lb+i}, v{Lb+i}, v{Lb+i+4}" for i in range(4)]
            c += [f"v_add_f32_dpp v{Lb+i}, v{Lb+i}, v{Lb+i} row_ror:8 row_mask:0xf bank_mask:0xf" for i in range(2)]
            c += [f"v_add_f32_dpp v{Lb+i}, v{Lb+2+i}, v{Lb+2+i} row_ror:8 row_mask:0xf bank_mask:0xc" for i in range(2)]
            c += self.allred2(Lb, Lb + 1, Lb + 2, "v_add_f32")
            c += L(f"v_mul_f32 v{nm}, {fhex(-1/1024)}, v{Lb}\nv_mul_f32 v{Lb+2}, {fhex(1/1024)}, v{Lb+2}\nv_fma_f32 v{Lb+2}, -v{nm}, v{nm}, v{Lb+2}\n"
                   f"v_max_f32 v{Lb+2}, 0, v{Lb+2}\nv_add_f32 v{Lb+2}, {fhex(1e-5)}, v{Lb+2}\nv_rsq_f32 v{rs}, v{Lb+2}")
            chains.append(c)
        if "nofix" not in self.dbg:
          W.stream(W.g(22), W.g(25, -1), [c[i] for i in range(len(chains[0])) for c in chains], hard=W.g(FX, 7))
        if l == 0:
            self.emit(self.w_dma(t, 0, 4))
        self.emit(self.kfirst(self.pi1, sROT1))
        for s in range(D - 1):
            self.emit(aload(s))
            if s == 0 and isA:
                if l == 0:
                    p(f"s_mov_b32 s{sPO}, s{sC0}")
                self.emit(hload(0))
                if l == 0:
                    p(f"s_mov_b32 s{sC0}, s{sPO}")
        if l == 0:
            self.raw2_issue()
            p.waitfor([("W", 0)])
            p("s_barrier")
        self.emit(bread(0))
        W.emit(p)
        self.over += W.over
        p(f".set L_cpf{l}, .")
        self.stamp(f"L{l}_k1done")

    def pack(self, a, b, n, scale):
        p = self.p
        if scale:
            for i in range(0, n, 2):
                p(f"v_pk_mul_f32 {vr(a+i,2)}, {vr(a+i,2)}, {vr(STAT+2*b,2)} op_sel:[0,1] op_sel_hi:[1,1]")
        for i in range(0, n, 2):
            p(f"v_cvt_pk_bf16_f32 v{a+i//2}, v{a+i}, v{a+i+1}")

    def o_store(self, va, rb, r):
        self.p(f"buffer_store_dwordx4 {vr(r,4)}, v{va}, {SRD(sWS)}, s{sK} offen offset:{rb*1024} sc1", wr=["crit"])

    def wo_rest(self, t, qs):
        return [x for q in qs for x in self.wo_dma(t, q)]

    def epi_a(self, l):
        p = self.p
        Q = lambda rb: acc(rb, 0)
        K = lambda rb: acc(rb, 2)
        V = lambda rb: acc(rb, 4)
        wv, wk = TMP, TMP + 1
        left = self.wo_left
        n1, n2 = self.wo_epi
        n1 = min(n1, len(left) - 1)
        p.begin()
        p(f"s_lshl_b32 s{sT0}, s{sWAVE}, 12\nv_add_u32 v{wv}, s{sT0}, v{vTW}\ns_lshl_b32 s{sT1}, s{sWAVE}, 10\nv_add_u32 v{wk}, s{sT1}, v{vLIN}")
        if l == 0:
            pass
        for r in range(4):
            p(f"v_add_f32 v{LAND+r}, v{LAND+r}, v{LAND+4+r}\nv_add_f32 v{LAND+8+r}, v{LAND+8+r}, v{LAND+12+r}\nv_add_f32 v{ACCH+r}, v{LAND+r}, v{LAND+8+r}")
            p(f"v_fmac_f32 v{ACCH+r}, v{CSUM+24+r}, v{STAT+8}")
        self.pack(ACCH, 4, 4, True)
        p(f"ds_write_b64 v{vHW}, {vr(ACCH,2)}", wr=["l_h"])
        for rb in (3, 2, 1, 0):
            self.pack(K(rb), rb, 8, True)
            self.pack(V(rb), rb, 8, True)
            for db in range(2):
                p(f"ds_write_b64 v{wv}, {vr(V(rb)+2*db,2)} offset:{LV + (1+rb)*1024 + db*512}", wr=[("l_v", rb, db)])
        p(f"ds_write_b128 v{wk}, {vr(K(3),4)} offset:{LK + 1024}", wr=["l_k"])
        for rb in range(4):
            self.pack(Q(rb), rb, 8, False)
        self.emit(self.wo_rest(0, left[:n1]))
        p.end("epiA1")
        p("s_waitcnt lgkmcnt(0)\ns_barrier")
        p.begin()
        KP = A_ + 0
        VT = lambda db: A_ + 4 + 12 * db
        rv = TMP + 2
        p(f"v_add_u32 v{rv}, s{sT0}, v{vTR}")
        p(f"s_lshl_b32 s{sK}, s{sH}, 12\ns_add_u32 s{sK}, s{sK}, {hex(self.OF[l])}")
        p(f"ds_read_b128 {reg(KP,4)}, v{wk} offset:{LK}", rd=["x"])
        for b in range(5):
            for db in range(2):
                p(f"ds_read_b64_tr_b16 {reg(VT(db)+2*b,2)}, v{rv} offset:{LV + b*1024 + db*512}", rd=["x"])
        va = vA1
        self.emit(self.wo_rest(0, left[n1:n1 + n2]))
        cq = lambda rb: STAT + 2 * rb
        SP = lambda rb: Q(rb) + 4
        SC = lambda rb: V(rb) + 4
        MX = lambda rb: TMP + 4 + rb
        for rb in range(4):
            p(mfma(SP(rb), K(rb - 1) if rb else KP, Q(rb), BIASP if rb else BIASP0))
            p(mfma(SC(rb), K(rb), Q(rb), BIASC))
            p(f"v_mul_f32 v{cq(rb)}, {fhex(LOG2E * 32 ** -0.5)}, v{cq(rb)+1}")
            for r in range(4):
                p(f"v_max_f32 v{SC(rb)+r}, v{SC(rb)+r}, v{SP(rb)+r}")
            p(f"v_max3_f32 v{MX(rb)}, v{SC(rb)}, v{SC(rb)+1}, v{SC(rb)+2}\nv_max_f32 v{MX(rb)}, v{MX(rb)}, v{SC(rb)+3}")
        for a_, b_, t_ in ((3, 2, 0), (1, 0, 1)):
            self.emit(self.allred2(MX(a_), MX(b_), TMP + 10 + t_, "v_max_f32"))
        for rb in (3, 2, 1, 0):
            mx = MX(rb) if rb % 2 == 1 else TMP + 10 + (0 if rb == 2 else 1)
            s_, P = SC(rb), SP(rb)
            p(f"v_mul_f32_e64 v{cq(rb)+1}, -v{mx}, v{cq(rb)}")
            for r in range(4):
                p(f"v_fma_f32 v{s_+r}, v{s_+r}, v{cq(rb)}, v{cq(rb)+1}\nv_exp_f32 v{s_+r}, v{s_+r}")
            p(f"v_cvt_pk_bf16_f32 v{s_}, v{s_}, v{s_+1}\nv_cvt_pk_bf16_f32 v{s_+1}, v{s_+2}, v{s_+3}")
            mp = MASKP if rb else MASKP0
            p(f"v_and_b32 v{P}, v{s_}, v{mp}\nv_and_b32 v{P+1}, v{s_+1}, v{mp+1}\nv_and_b32 v{P+2}, v{s_}, v{MASKC}\nv_and_b32 v{P+3}, v{s_+1}, v{MASKC+1}")
            O = LAND + 8 * rb
            SM = K(rb) + 4
            p(mfma(SM, ONES, P, None))
            for db in range(2):
                p(mfma(O + 4 * db, VT(db) + 2 * rb, P, None))
            p(f"v_rcp_f32 v{SM}, v{SM}")
            for i in range(0, 8, 2):
                p(f"v_pk_mul_f32 {vr(O+i,2)}, {vr(O+i,2)}, {vr(SM,2)} op_sel:[0,0] op_sel_hi:[1,0]")
            for i in range(0, 8, 2):
                p(f"v_cvt_pk_bf16_f32 v{O+i//2}, v{O+i}, v{O+i+1}")
            self.o_store(va, rb, O)
        p.end("epiA2", insert=[(self.eh1, [self.sig(sSGC)])] if self.spec1 else [])
        self.wo_left = left[n1 + n2:]

    def feat(self, X, b, P, E, t):
        p = self.p
        for fb in range(2):
            p(mfma(P + 4 * fb, WPHI + 4 * fb, X, None))
        mx, nm, t2, c = t, t + 1, t + 2, t + 4
        p(f"v_max3_f32 v{mx}, v{P}, v{P+1}, v{P+2}\nv_max3_f32 v{nm}, -v{P}, -v{P+1}, -v{P+2}")
        for i in (3, 5):
            p(f"v_max3_f32 v{mx}, v{mx}, v{P+i}, v{P+i+1}\nv_max3_f32 v{nm}, v{nm}, -v{P+i}, -v{P+i+1}")
        p(f"v_max_f32 v{mx}, v{mx}, v{P+7}\nv_max_f32_e64 v{nm}, v{nm}, -v{P+7}")
        self.emit(self.allred2(mx, nm, t2, "v_max_f32"))
        p(f"v_mul_f32 v{c}, {fhex(LOG2E)}, v{STAT+2*b+1}")
        p(f"v_mul_f32_e64 v{mx}, -v{mx}, v{c}\nv_mul_f32_e64 v{nm}, -v{t2}, v{c}")
        for i in range(0, 8, 2):
            p(f"v_pk_fma_f32 {vr(E+i,2)}, {vr(P+i,2)}, {vr(c,2)}, {vr(mx,2)} op_sel:[0,0,0] op_sel_hi:[1,0,0]")
            p(f"v_pk_fma_f32 {vr(P+i,2)}, {vr(P+i,2)}, {vr(c,2)}, {vr(mx,2)} op_sel:[0,0,1] op_sel_hi:[1,0,1] neg_lo:[1,0,0] neg_hi:[1,0,0]")
        for i in range(8):
            p(f"v_exp_f32 v{E+i}, v{E+i}\nv_exp_f32 v{P+i}, v{P+i}")

    def epi_b(self, l):
        p = self.p
        ki = l // 2
        spec = self.speck
        Q = lambda rb: acc(rb, 0)
        K = lambda rb: acc(rb, 2)
        V = lambda rb: acc(rb, 4)
        wv, wp = TMP, TMP + 1
        left = self.wo_left
        earlyq = [q for q in left if q != 0]
        lateq = [q for q in left if q not in earlyq]
        p.begin()
        p(f"s_lshl_b32 s{sT0}, s{sWAVE}, 12\nv_add_u32 v{wv}, s{sT0}, v{vTW}\nv_add_u32 v{wp}, s{sT0}, v{wv}")
        for rb in range(4):
            self.pack(K(rb), rb, 8, False)
            self.pack(V(rb), rb, 8, True)
            for db in range(2):
                p(f"ds_write_b64 v{wv}, {vr(V(rb)+2*db,2)} offset:{LV + rb*1024 + db*512}", wr=[("l_v", rb, db)])
        for rb in range(4):
            u = rb % 2
            P, E, t = LAND + 16 * u, LAND + 16 * u + 8, TMP + 4 + 6 * u
            self.feat(K(rb), rb, P, E, t)
            PK, S = K(rb), V(rb)
            for sg, src in ((0, E), (1, P)):
                for i in range(4):
                    p(f"v_cvt_pk_bf16_f32 v{PK+4*sg+i}, v{src+2*i}, v{src+2*i+1}")
                p(mfma(S + 4 * sg, ONES, PK + 4 * sg, None))
                p(f"v_rcp_f32 v{S+4*sg}, v{S+4*sg}")
                for i in range(0, 8, 2):
                    p(f"v_pk_mul_f32 {vr(src+i,2)}, {vr(src+i,2)}, {vr(S+4*sg,2)} op_sel:[0,0] op_sel_hi:[1,0]")
                for i in range(4):
                    p(f"v_cvt_pk_bf16_f32 v{PK+4*sg+i}, v{src+2*i}, v{src+2*i+1}")
                for fb in range(2):
                    p(f"ds_write_b64 v{wp}, {vr(PK+4*sg+2*fb,2)} offset:{LPHI + rb*2048 + (2*sg+fb)*512}", wr=[("l_p", rb, sg, fb)])
        self.emit(self.wo_rest(1, earlyq))
        p.end("epiB_k")
        p("s_waitcnt lgkmcnt(0)\ns_barrier")
        self.stamp(f"L{l}_phik")
        p.begin()
        rp, v8 = TMP + 2, TMP + 3
        KV = LAND
        p(f"s_lshl_b32 s{sT0}, s{sWAVE}, 9\nv_add_u32 v{rp}, s{sT0}, v{vTR}")
        p(f"s_lshl_b32 s{sT1}, s{sH}, 2\ns_add_u32 s{sT1}, s{sT1}, s{sWAVE}\ns_lshl_b32 s{sT1}, s{sT1}, 3")
        p(f"s_add_u32 s{sT2}, s{sT1}, s{sRG}\ns_lshl_b32 s{sT3}, s{sT2}, 7\ns_add_u32 s{sT3}, s{sT3}, {hex(KVZ[ki])}")
        p(f"s_lshl_b32 s{sT2}, s{sT2}, 11\ns_add_u32 s{sT2}, s{sT2}, {hex(self.KVP[ki])}")
        va, vd = vLIN, vDUP
        for m in range(8):
            F = A_ + 12 * m
            for pp in range(2):
                p(f"ds_read_b64_tr_b16 {reg(F+2*pp,2)}, v{rp} offset:{LPHI + (2*m+pp)*2048}", rd=["x"])
                for db in range(2):
                    p(f"ds_read_b64_tr_b16 {reg(F+4+4*db+2*pp,2)}, v{vTR} offset:{LV + (2*m+pp)*1024 + db*512}", rd=["x"])
            for db in range(2):
                p(mfma(KV + 4 * db, F, F + 4 + 4 * db, KV + 4 * db if m else None))
            p(mfma(KV + 8, F, ONES, KV + 8 if m else None))
        for db in range(2):
            p(f"buffer_store_dwordx4 {vr(KV+4*db,4)}, v{va}, {SRD(sWS)}, s{sT2} offen offset:{db*1024} sc1", wr=["crit"])
        p(f"buffer_store_dwordx4 {vr(KV+8,4)}, v{vd}, {SRD(sWS)}, s{sT3} offen sc1", wr=["crit"])
        for rb in range(4):
            self.pack(Q(rb), rb, 8, False)
        mk8 = f"v_cndmask_b32 v{v8}, 2.0, v{vSM}, s[{sM8}:{sM8+1}]"
        p.end("epiB_kv", insert=[(self.ehk, [mk8, self.sig(sSGC, v8)])] if spec else [(0, [mk8])])
        self.stamp(f"L{l}_kvst")
        EQ = lambda rb: K(rb)

        def qfeat(rb, P, E):
            self.feat(Q(rb), rb, P, E, TMP + 4 + 6 * (rb % 2))
            for sg, src in ((0, E), (1, P)):
                for i in range(4):
                    p(f"v_cvt_pk_bf16_f32 v{EQ(rb)+4*sg+i}, v{src+2*i}, v{src+2*i+1}")
        if spec:
            p(f"s_add_u32 s{sT0}, s{sIDK}, {hex(I_KV(l)*65536 + HINT)}")
        p.begin()
        qfeat(0, LAND + 16, LAND + 24)
        qfeat(1, V(1), V(0))
        p.end("epiB_q1", insert=[(500, [f"buffer_load_dword v{vT0}, off, {SRD(sWS)}, s{sT0} sc1"])] if spec else [])
        p(f"s_add_u32 s{sSGC}, s{sGKB}, {hex(I_KV(l)*65536)}")
        if spec:
            self.poll(sIDK, I_KV(l) * 65536 + HINT, 8, allwaves=True, pre=True)
        else:
            p.waitfor(["crit"])
            p("s_barrier")
            p(self.sig(sSGC, v8))
            p.begin()
            qfeat(2, LAND + 16, LAND + 24)
            qfeat(3, V(1), V(0))
            p.end("epiB_q2")
            self.poll(sIDK, I_KV(l) * 65536, 8)
            p("s_barrier")
        self.stamp(f"L{l}_kvseen")
        za = TMP + 16
        land = [LAND, LAND + 8, V(0), V(1), CSUM, CSUM + 8, CSUM + 16, Q(0)]
        Z = Q(1)

        def kvload():
            p(f"s_lshl_b32 s{sT1}, s{sH}, 2\ns_add_u32 s{sT1}, s{sT1}, s{sWAVE}")
            p(f"s_lshl_b32 s{sT3}, s{sT1}, 10\ns_add_u32 s{sT3}, s{sT3}, {hex(KVZ[ki])}")
            p(f"s_lshl_b32 s{sT2}, s{sT1}, 14\ns_add_u32 s{sT2}, s{sT2}, {hex(self.KVP[ki])}")
            p(f"v_and_b32 v{za}, 7, v{vLANE}\nv_lshlrev_b32 v{za}, 7, v{za}\nv_lshrrev_b32 v{za+1}, 4, v{vLANE}\nv_lshl_add_u32 v{za}, v{za+1}, 4, v{za}")
            p(f"buffer_load_dwordx4 {vr(Z,4)}, v{za}, {SRD(sWS)}, s{sT3} offen sc1")
            for g_ in range(8):
                if g_ and g_ % 2 == 0:
                    p(f"s_add_u32 s{sT2}, s{sT2}, 4096")
                for db in range(2):
                    p(f"buffer_load_dwordx4 {vr(land[g_]+4*db,4)}, v{vLIN}, {SRD(sWS)}, s{sT2} offen offset:{(g_%2)*2048 + db*1024} sc1")

        def kvsum():
            for sh in (4, 2, 1):
                for i in range(4):
                    p(f"v_add_f32_dpp v{Z+i}, v{Z+i}, v{Z+i} row_ror:{sh} row_mask:0xf bank_mask:0xf")
            for g_ in range(1, 8):
                for i in range(0, 8, 2):
                    p(f"v_pk_add_f32 {vr(land[0]+i,2)}, {vr(land[0]+i,2)}, {vr(land[g_]+i,2)}")
        p.begin()
        kvload()
        if spec:
            qfeat(2, LAND + 16, LAND + 24)
            qfeat(3, V(3), V(2))
        kvsum()
        if spec:
            a, c = land[0], land[1]
            p(f"v_fma_f32 v{c}, v{a}, v{a+1}, v{a+2}\nv_fma_f32 v{c+1}, v{a+3}, v{a+4}, v{a+5}\nv_fma_f32 v{c+2}, v{a+6}, v{a+7}, v{Z}")
            p(f"v_fma_f32 v{c+3}, v{Z+1}, v{Z+2}, v{Z+3}\nv_fma_f32 v{c}, v{c}, v{c+1}, v{c+2}\nv_cmp_u_f32 vcc, v{c}, v{c+3}")
        p.end("epiB_red")
        if spec:
            R, B = f"L_kvredo{l}", f"L_kvback{l}"
            p(f"s_barrier\n{self.sig(sSGC, v8)}\ns_cbranch_vccnz {R}\n{B}:")

            def tail():
                p(f"{R}:")
                self.count_retry()
                self.poll(sIDK, I_KV(l) * 65536, 8, allwaves=True)
                kvload()
                kvsum()
                p(f"s_branch {B}")
            self.tail.append(tail)
        p.begin()
        for i in range(4):
            p(f"v_cvt_pk_bf16_f32 v{land[0]+i}, v{land[0]+2*i}, v{land[0]+2*i+1}")
        for i in range(2):
            p(f"v_cvt_pk_bf16_f32 v{Z+i}, v{Z+2*i}, v{Z+2*i+1}")
            p(f"v_cndmask_b32 v{Z+i}, 0, v{Z+i}, s[{sZ0}:{sZ0+1}]\nv_cndmask_b32 v{Z+i}, v{Z+i}, v{ONES}, s[{sZ1}:{sZ1+1}]")
        wa = TMP + 4
        p(f"s_lshr_b32 s{sT0}, s{sWAVE}, 1\ns_mul_i32 s{sT0}, s{sT0}, 3072\ns_and_b32 s{sT1}, s{sWAVE}, 1\ns_lshl_b32 s{sT1}, s{sT1}, 3\ns_add_u32 s{sT0}, s{sT0}, s{sT1}")
        p(f"v_add_u32 v{wa}, s{sT0}, v{vLIN}")
        for db in range(2):
            p(f"ds_write_b64 v{wa}, {vr(land[0]+2*db,2)} offset:{db*1024}", wr=[("k", db)])
        p(f"ds_write_b64 v{wa}, {vr(Z,2)} offset:2048", wr=[("k", 2)])
        p(f"s_lshl_b32 s{sK}, s{sH}, 12\ns_add_u32 s{sK}, s{sK}, {hex(self.OF[l])}")
        p(f"s_add_u32 s{sSGC}, s{sG1B}, {hex(I_S1(l)*65536 + HINT)}")
        p.end("epiB_x")
        p("s_waitcnt lgkmcnt(0)\ns_barrier")
        self.stamp(f"L{l}_kvred")
        p.begin()
        F = A_
        for i in range(6):
            p(f"ds_read_b128 {reg(F+4*i,4)}, v{vLIN} offset:{i*1024}", rd=["x"])
        self.emit(self.wo_rest(1, lateq))
        for rb in range(4):
            N = [Q(rb), V(rb)]
            DS = LAND + 8 * rb
            for sg in range(2):
                p(mfma(DS + 4 * sg, F + 12 * sg + 8, EQ(rb) + 4 * sg, None))
            for sg in range(2):
                for db in range(2):
                    p(mfma(N[sg] + 4 * db, F + 12 * sg + 4 * db, EQ(rb) + 4 * sg, None))
            p(f"v_rcp_f32 v{DS+2}, v{DS+1}\nv_rcp_f32 v{DS+3}, v{DS+5}")
            p(f"v_mul_f32 v{DS}, v{DS}, v{DS+2}\nv_fmac_f32 v{DS}, v{DS+4}, v{DS+3}\nv_add_f32 v{DS}, {fhex(1e-6)}, v{DS}\nv_rcp_f32 v{DS}, v{DS}")
            p(f"v_mul_f32 v{DS+2}, v{DS+2}, v{DS}\nv_mul_f32 v{DS+3}, v{DS+3}, v{DS}")
            for i in range(8):
                p(f"v_mul_f32 v{N[0]+i}, v{N[0]+i}, v{DS+2}\nv_fmac_f32 v{N[0]+i}, v{N[1]+i}, v{DS+3}")
            for i in range(4):
                p(f"v_cvt_pk_bf16_f32 v{N[0]+i}, v{N[0]+2*i}, v{N[0]+2*i+1}")
            self.o_store(vA1, rb, N[0])
        p.end("epiB_o", insert=[(self.eh1, [self.sig(sSGC)])] if self.spec1 else [])
        self.wo_left = []

    def k2_init(self):
        p = self.p
        self.emit(self.kfirst(self.pi2, sROT2))
        for i in range(16):
            p(f"v_lshlrev_b32 v{ACC+2*i}, 16, v{XRES+i}\nv_and_b32 v{ACC+2*i+1}, 0xffff0000, v{XRES+i}")

    def k2_main(self, l):
        p = self.p
        D = self.D2
        last = l == self.nlayers - 1
        ring = lambda s, b: RING + (s % D) * 8 + 4 * b
        bfr = lambda s, j: BFR + (s % 2) * 16 + 4 * j
        acc2 = lambda b, j: ACC + 16 * b + 4 * j

        def aload(s):
            g = [f"buffer_load_dwordx4 {reg(ring(s,b),4)}, v{vA2}, {SRD(sSRC)}, s{sK} offen offset:{b*1024} sc1" for b in range(2)]
            return g + self.knext(self.pi2, s + 1)

        def bread(s):
            return [f"ds_read_b128 {reg(bfr(s,j),4)}, v{vHB if s >= 16 else vBB} offset:{(s%16)*4096 + j*1024}" for j in range(4)]

        steps = [[mfma(acc2(b, j), bfr(s, j), ring(s, b), acc2(b, j)) for j in range(4) for b in ((0, 1) if j % 2 == 0 else (1, 0))] for s in range(32)]
        W = Weave(steps)
        for s in range(32):
            pre = [waitfor_inst(rr(ring(s, 0), 8) + rr(bfr(s, 0), 16))]
            if s == 0:
                pre.append(lambda: self.stamp(f"L{l}_k2first"))
            W.pre[s] = pre
            if s + D - 1 < 32:
                W.stream(W.g(s, 2), W.g(s, 2), aload(s + D - 1), hard=W.g(s, -1))
            if s + 1 < 32:
                W.stream(W.g(s), W.g(s, 0), bread(s + 1), hard=W.g(s, -1))
        if self.spec1:
            W.stream(W.g(32 - D + 1, 5), W.g(32 - D + 1, 5), [self.sig(sSGA)])
        if l == 0:
            W.stream(W.g(1, 5), W.g(1, 5), [f"buffer_atomic_add v{vONE}, v{vG2S}, {SRD(sDBG)}, s{sSGB} offen sc1"], hard=W.g(1, 5))
            W.stream(W.g(32 - D + 2, 5), W.g(32 - D + 2, 5), [f"buffer_load_dword v{vT0}, v{vG2L}, {SRD(sDBG)}, 0 offen offset:128 sc1"])
        p(f"L_k2go{l}:")
        for s in range(D - 1):
            self.emit(aload(s))
        self.emit(bread(0))
        W.emit(p)
        self.over += W.over
        self.stamp(f"L{l}_k2done")
        if l == 0:
            p.waitfor([vT0])
        if self.spec1:
            R = f"L_k2redo{l}"
            p(f"v_cmp_u_f32 vcc, v{acc2(0,0)}, v{acc2(1,0)}\ns_and_b32 vcc_lo, vcc_lo, s{sRETRY}\ns_cbranch_scc1 {R}")

            def tail():
                p(f"{R}:")
                self.count_retry()
                p(f"s_mov_b32 s{sRETRY}, 0\ns_mov_b32 s{sSGA}, {hex(OOB)}\ns_mov_b32 s{sSGB}, {hex(OOB)}\ns_mov_b32 s{sSGC}, {hex(OOB)}")
                self.poll(sID1, I_S1(l) * 65536, 32, allwaves=True)
                p("s_nop 7")
                self.k2_init()
                p(f"s_branch L_k2go{l}")
            self.tail.append(tail)

    def layer(self, l):
        p = self.p
        t = l & 1
        spec = self.spec1
        last = l == self.nlayers - 1
        if t == 0:
            p(f"s_add_u32 s{sSGC}, s{sG1B}, {hex(I_S1(l)*65536 + HINT)}")
        else:
            p(f"s_add_u32 s{sSGC}, s{sGKB}, {hex(I_KV(l)*65536 + HINT)}")
        self.k1_main(l)
        if l == 0:
            p.waitfor(rr(LAND, 16))
            self.poll(None, 0, 8, allwaves=True, srd=sDBG, vaddr=vG2L, pre=True, sleep=16)
        if t == 0:
            self.epi_a(l)
        else:
            self.epi_b(l)
        self.stamp(f"L{l}_epi")
        p(f"s_add_u32 s{sSGA}, s{sG1B}, {hex(I_S1(l)*65536)}")
        left = self.wo_left
        if spec:
            p(f"s_add_u32 s{sT0}, s{sID1}, {hex(I_S1(l)*65536 + HINT)}\nbuffer_load_dword v{vT0}, off, {SRD(sWS)}, s{sT0} sc1")
            self.emit(self.wo_rest(t, left))
        else:
            self.emit(self.wo_rest(t, left[:2]))
        self.src_srd(self.OF[l])
        p(f"v_add_u32 v{vBB}, {WO_L}, v{vLIN}\nv_add_u32 v{vHB}, {WO_L + 65536}, v{vLIN}")
        self.k2_init()
        if l == 0:
            p(f"s_mov_b32 s{sSGB}, 128")
        if spec:
            p(f"s_mov_b32 s{sRETRY}, -1")
            p.waitfor([vT0])
            self.poll(sID1, I_S1(l) * 65536 + HINT, 32, pre=True)
        else:
            p.waitfor(["crit"])
            p("s_barrier")
            self.stamp(f"L{l}_oack")
            p(self.sig(sSGA))
            self.emit(self.wo_rest(t, left[2:]))
            self.poll(sID1, I_S1(l) * 65536, 32)
        p("s_waitcnt vmcnt(0)\ns_barrier")
        self.stamp(f"L{l}_S1")
        self.k2_main(l)
        for i in range(16):
            p(f"v_cvt_pk_bf16_f32 v{XRES+i}, v{ACC+2*i}, v{ACC+2*i+1}")
        if last:
            g, j = TMP + 1, TMP + 2
            p(f"v_lshrrev_b32 v{g}, 4, v{vLANE}\nv_and_b32 v{j}, 15, v{vLANE}")
            self.xrow_addr(TMP, g, j)
            p(f"s_mov_b32 s{sT0}, 0x10000")
            for b in range(2):
                for hf in range(2):
                    p(f"buffer_store_dwordx4 {vr(XRES+8*b+4*hf,4)}, v{TMP}, {SRD(sOUT)}, {'s%d'%sT0 if b else 0} offen offset:{64*hf}")
            E = p.label("Lep")
            p(f"s_or_b32 s{sT0}, s2, s{sWAVE}\ns_cbranch_scc1 {E}\ns_mov_b32 s{sT0}, {hex(EPOCH)}\nbuffer_store_dword a242, off, {SRD(sWS)}, s{sT0} sc1\n{E}:")
            return
        self.k2_store(l + 1)
        nt = 1 - t
        exp = f"s{sEXP}" if nt == 0 else 32
        p(f"s_add_u32 s{sSGA}, s{sG2B}, {hex(I_S2(l)*65536)}\ns_add_u32 s{sSGB}, s{sG2H}, {hex(I_S2(l)*65536)}")
        self.src_srd(self.XF[l + 1])
        if l == 0:
            self.poll(None, 128, 8, allwaves=True, srd=sDBG, vaddr=vG2L, pre=True, sleep=16)
        if self.nq1:
            p("s_barrier")
            self.stamp(f"L{l}_xst")
            self.emit(self.w_dma(nt, 0, self.nq1))
        p(f"s_waitcnt vmcnt({3*self.nq1})\ns_barrier")
        self.stamp(f"L{l}_xack")
        p(self.sig(sSGA))
        if nt == 0:
            p(self.sig(sSGB))
        self.w_dma2(nt, self.nq1, self.npq)
        self.poll(sID2, I_S2(l) * 65536, exp)
        p(f"s_waitcnt vmcnt({min(62, 6*max(0, self.npq - max(4, self.nq1)))})")
        E = p.label("Lw")
        p(f"s_cmp_ge_u32 s{sWAVE}, 2\ns_cbranch_scc1 {E}\ns_waitcnt vmcnt(0)\n{E}:\ns_barrier")
        self.stamp(f"L{l}_S2")

    def build(self):
        p = self.p
        self.phase0()
        for l in range(self.nlayers):
            self.layer(l)
        if self.stamps:
            p("s_waitcnt vmcnt(0)")
            self.stamp("end")
            p(f"s_lshl_b32 s{sT0}, s2, 2\ns_add_u32 s{sT0}, s{sT0}, s{sWAVE}\ns_lshl_b32 s{sT0}, s{sT0}, 8\ns_add_u32 s{sT0}, s{sT0}, {hex(TS)}")
            p(f"v_lshlrev_b32 v{vT0}, 2, v{vLANE}\nbuffer_store_dword a240, v{vT0}, {SRD(sWS)}, s{sT0} offen")
            p(f"s_add_u32 s{sT0}, s{sT0}, 0x40000\nbuffer_store_dword a241, v{vT0}, {SRD(sWS)}, s{sT0} offen")
        if self.probe:
            p("s_waitcnt vmcnt(0)")
            self.stamp("end")
            p("s_sub_u32 s86, s86, s84\ns_lshl_b32 s86, s86, 2\ns_add_u32 s86, s86, 20000")
            p("L_spin:\ns_memrealtime s[60:61]\ns_waitcnt lgkmcnt(0)\ns_sub_u32 s60, s60, s84\ns_cmp_lt_u32 s60, s86\ns_cbranch_scc1 L_spin")
        p("L_end:\ns_endpgm")
        for t in self.tail:
            t()
        text, nnop = p.finalize()
        text = "\n".join(re.sub(r" ;c\d+", "", x.strip()) for x in text.split("\n"))
        text += "L_code_end:\n"
        text = text.replace("CODE_BYTES", f"(L_end - {KNAME} - 64)")
        self.nnop = nnop
        return wrap([(KNAME, text, 512, 256, 102)], [(KNAME, 256, 256, 163840)])


if __name__ == "__main__":
    import argparse, json
    ap = argparse.ArgumentParser()
    ap.add_argument("-o", default="k.s")
    ap.add_argument("--stamps", action="store_true")
    ap.add_argument("--kw", default="{}")
    a = ap.parse_args()
    g = Gen(stamps=a.stamps, **json.loads(a.kw))
    s = g.build()
    if a.stamps:
        s = s.replace(".amdgcn_target", "; STAMPS " + ",".join(g.stnames) + "\n.amdgcn_target", 1)
    open(a.o, "w").write(s)
    print("nops", g.nnop, "over", g.over, "bytes", len(s))
    print("\n".join(g.info))
    for e in g.p.est:
        print(e)
```
